```python
import torch

def _softmax(x, axis=-1):
    return torch.softmax(x, dim=axis)

def _gelu(x):
    return torch.nn.functional.gelu(x, approximate='tanh')

def _silu(x):
    return torch.nn.functional.silu(x)

def _sigmoid(x):
    return torch.sigmoid(x)

def _layernorm(x, axis=-1, eps=1e-05):
    m = x.mean(dim=axis, keepdim=True)
    v = x.var(dim=axis, keepdim=True, unbiased=False)
    return (x - m) / torch.sqrt(v + eps)

def _scatter_add(tgt, idx, src, axis=0):
    return tgt.clone().index_add_(axis, idx, src)

def _segment_sum(src, seg, n):
    out = torch.zeros((n,) + src.shape[1:], dtype=src.dtype)
    return out.index_add_(0, seg, src)

def _pad(x, pw):
    flat = tuple((v for pair in reversed(pw) for v in pair))
    return torch.nn.functional.pad(x, flat)
kernel_name = 'parallel_sum__memory_aug_recurrent_mem_tr__dense_activation_relu__prompt'

def setup_inputs():

    _w = lambda a: (lambda t: t.to(torch.bfloat16) if t.is_floating_point() else t)(torch.as_tensor(a))

    def _A_setup():
        B, S, Dm = (1, 2048, 448)
        H, Dh = (16, 256)
        M, seg = (8, 32)
        seg = min(seg, S)
        S = S // seg * seg
        return {'x': _w((lambda *s: torch.randn(*s, dtype=torch.bfloat16) * 0.05)(B, S, Dm)), 'mem0': _w((lambda *s: torch.randn(*s, dtype=torch.bfloat16) * 1.6)(B, M, Dm)), 'Wq': _w((lambda *s: torch.randn(*s, dtype=torch.bfloat16) * 0.8)(Dm, H, Dh) * Dm ** (-0.5)), 'Wk': _w((lambda *s: torch.randn(*s, dtype=torch.bfloat16) * 0.8)(Dm, H, Dh) * Dm ** (-0.5)), 'Wv': _w((lambda *s: torch.randn(*s, dtype=torch.bfloat16) * 1.6)(Dm, H, Dh) * Dm ** (-0.5)), 'Wo': _w((lambda *s: torch.randn(*s, dtype=torch.bfloat16) * 1.6)(H, Dh, Dm) * (H * Dh) ** (-0.5)), 'seg_len': seg}
    _A_in = _A_setup()

    def _B_setup():
        B, S, D, Dff = (1, 2048, 448, 1792)
        return {'x': _w((lambda *s: torch.randn(*s, dtype=torch.bfloat16) * 0.05)(B, S, D)), 'w1': _w((lambda *s: torch.randn(*s, dtype=torch.bfloat16) * 0.05)(D, Dff)), 'w2': _w((lambda *s: torch.randn(*s, dtype=torch.bfloat16) * 0.05)(Dff, D))}
    _B_in = _B_setup()
    return {'A_x': _A_in['x'], 'A_mem0': _A_in['mem0'], 'A_Wq': _A_in['Wq'], 'A_Wk': _A_in['Wk'], 'A_Wv': _A_in['Wv'], 'A_Wo': _A_in['Wo'], 'A_seg_len': _A_in['seg_len'], 'B_x': _B_in['x'], 'B_w1': _B_in['w1'], 'B_w2': _B_in['w2']}

def reference(A_x, A_mem0, A_Wq, A_Wk, A_Wv, A_Wo, A_seg_len, B_x, B_w1, B_w2):

    def _A_ref(x, mem0, Wq, Wk, Wv, Wo, seg_len):
        B, S, Dm = x.shape
        H, Dh = (Wq.shape[1], Wq.shape[2])
        M = mem0.shape[1]
        scale = Dh ** (-0.5)
        n_seg = S // seg_len
        L = M + seg_len
        idx = torch.arange(L)
        mask = (idx[:, None] < M) | (idx[:, None] >= idx[None, :])
        mem = mem0
        outs = []
        for s in range(n_seg):
            xs = x[:, s * seg_len:(s + 1) * seg_len, :].clone()
            h = torch.concatenate([mem, xs], axis=1)
            q = torch.einsum('btd,dhe->bhte', h, Wq)
            k = torch.einsum('btd,dhe->bhte', h, Wk)
            v = torch.einsum('btd,dhe->bhte', h, Wv)
            scores = torch.einsum('bhqe,bhke->bhqk', q, k) * scale
            scores = torch.where(mask[None, None], scores, -1000000000.0)
            p = _softmax(scores, axis=-1)
            o = torch.einsum('bhqk,bhke->bhqe', p, v)
            o = torch.einsum('bhte,hed->btd', o, Wo)
            mem = o[:, :M, :].clone()
            outs.append(o[:, M:, :])
        return torch.concatenate(outs, axis=1)

    def _B_ref(x, w1, w2):
        h = torch.einsum('bsd,df->bsf', x, w1)
        zero = torch.zeros_like(h)
        h = torch.maximum(h, zero)
        return torch.einsum('bsf,fd->bsd', h, w2)
    x = A_x
    xn = _layernorm(x, axis=-1)
    return x + _A_ref(xn, A_mem0, A_Wq, A_Wk, A_Wv, A_Wo, A_seg_len) + _B_ref(xn, B_w1, B_w2)
```

```python
import re

REG_RE = re.compile(r'^-?\|?(?:abs\()?([vas])(?:(\d+)|\[(\d+):(\d+)\])\)?\|?$')
TRANS = ('v_exp_f32', 'v_log_f32', 'v_rcp_f32', 'v_rsq_f32', 'v_sqrt_f32', 'v_sin_f32', 'v_cos_f32', 'v_rcp_iflag_f32')


def regs_of(tok):
    tok = tok.strip()
    if tok in ('vcc',):
        return {('s', 106), ('s', 107)}
    if tok == 'vcc_lo':
        return {('s', 106)}
    if tok == 'vcc_hi':
        return {('s', 107)}
    if tok == 'exec':
        return {('s', 126), ('s', 127)}
    if tok == 'exec_lo':
        return {('s', 126)}
    if tok == 'exec_hi':
        return {('s', 127)}
    if tok == 'm0':
        return {('s', 124)}
    m = REG_RE.match(tok)
    if not m:
        return set()
    f = m.group(1)
    if m.group(2) is not None:
        return {(f, int(m.group(2)))}
    return {(f, i) for i in range(int(m.group(3)), int(m.group(4)) + 1)}


def split_ops(s):
    out, depth, cur = [], 0, ''
    for ch in s:
        if ch in '[(':
            depth += 1
        elif ch in '])':
            depth -= 1
        if ch == ',' and depth == 0:
            out.append(cur.strip())
            cur = ''
        else:
            cur += ch
    if cur.strip():
        out.append(cur.strip())
    return out


class Ins:
    __slots__ = ('text', 'mn', 'kind', 'rd', 'wr', 'passes', 'srcA', 'srcC', 'dpp', 'states', 'target', 'wide',
                 'label', 'sdata', 'lanesel', 'isldsdma')

    def __init__(self, text):
        self.text = text
        self.label = None
        self.target = None
        self.rd = set()
        self.wr = set()
        self.passes = 0
        self.srcA = set()
        self.srcC = set()
        self.dpp = False
        self.states = 1
        self.wide = False
        self.sdata = set()
        self.lanesel = set()
        self.isldsdma = False
        t = text.split(';')[0].split('//')[0].strip()
        if not t or t.startswith('.'):
            self.kind = 'none'
            self.mn = ''
            self.states = 0
            return
        if t.endswith(':'):
            self.kind = 'label'
            self.label = t[:-1]
            self.mn = ''
            self.states = 0
            return
        parts = t.split(None, 1)
        mn = parts[0]
        self.mn = mn
        rest = parts[1] if len(parts) > 1 else ''
        ops = split_ops(rest)
        mods = ''
        if ops:
            lp = ops[-1].split(None, 1)
            if len(lp) > 1 and not ops[-1].startswith('hwreg') and not ops[-1].startswith('vmcnt') and not ops[-1].startswith('lgkmcnt'):
                ops[-1] = lp[0]
                mods = lp[1]
        R = [regs_of(o) for o in ops]
        base = re.sub(r'_(e32|e64|dpp|sdwa)$', '', mn)
        if mn.startswith('v_mfma') or mn.startswith('v_smfmac'):
            self.kind = 'mfma'
            self.passes = 8 if '32x32' in mn else 4
            self.wr = R[0]
            if mn.startswith('v_smfmac'):
                self.srcA = R[1] | R[2] | R[3]
                self.srcC = set(R[0])
            else:
                self.srcA = R[1] | R[2]
                self.srcC = R[3]
            self.rd = self.srcA | self.srcC
        elif mn.startswith('v_'):
            self.kind = 'trans' if base in TRANS else 'valu'
            self.dpp = bool(re.search(r'quad_perm|row_|wave_', mods)) or mn.endswith('_dpp')
            if base.startswith('v_permlane') and 'swap' in base:
                self.kind = 'permlane'
                self.wr = R[0] | R[1]
                self.rd = R[0] | R[1]
            elif base.startswith('v_cmp'):
                self.wr = R[0]
                self.rd = set().union(*R[1:])
            elif base in ('v_add_co_u32', 'v_sub_co_u32', 'v_subrev_co_u32', 'v_addc_co_u32', 'v_subb_co_u32',
                          'v_div_scale_f32', 'v_mad_u64_u32'):
                self.wr = R[0] | R[1]
                self.rd = set().union(*R[2:])
            elif base in ('v_readlane_b32', 'v_readfirstlane_b32'):
                self.kind = 'readlane'
                self.wr = R[0]
                self.rd = set().union(*R[1:])
                if len(R) > 2:
                    self.lanesel = R[2]
            elif base == 'v_nop':
                pass
            else:
                self.wr = R[0]
                self.rd = set().union(*R[1:]) if len(R) > 1 else set()
                if base in ('v_fmac_f32', 'v_pk_fmac_f16', 'v_writelane_b32', 'v_dot2c_f32_bf16') or self.dpp:
                    self.rd |= R[0]
                if base == 'v_cndmask_b32' and len(ops) == 3:
                    self.rd |= regs_of('vcc')
                if base == 'v_div_fmas_f32':
                    self.rd |= regs_of('vcc')
        elif mn.startswith('buffer_') or mn.startswith('global_') or mn.startswith('flat_'):
            self.kind = 'vmem'
            allm = (' ' + mods + ' ')
            if mn in ('buffer_wbl2', 'buffer_inv'):
                pass
            elif ' lds ' in allm or '_lds_' in mn:
                self.isldsdma = True
                self.rd = set().union(*R) | regs_of('m0')
            elif '_load' in mn:
                self.wr = R[0]
                self.rd = set().union(*R[1:])
                if 'd16' in mn:
                    self.rd |= R[0]
            elif '_store' in mn:
                self.rd = set().union(*R)
                self.sdata = R[0] if mn.startswith('buffer_') else R[1]
                self.wide = mn.endswith('x3') or mn.endswith('x4')
            elif '_atomic' in mn:
                self.rd = set().union(*R)
                if ' sc0 ' in allm:
                    self.wr = R[0]
            else:
                raise ValueError('unknown vmem ' + text)
        elif mn.startswith('ds_'):
            self.kind = 'ds'
            if mn.startswith('ds_read') or mn.startswith('ds_bpermute') or mn.startswith('ds_permute') or mn.startswith('ds_swizzle'):
                self.wr = R[0]
                self.rd = set().union(*R[1:])
            elif '_rtn' in mn:
                self.wr = R[0]
                self.rd = set().union(*R[1:])
            else:
                self.rd = set().union(*R)
        elif mn.startswith('s_'):
            self.kind = 'salu'
            if mn == 's_nop':
                self.states = int(ops[0], 0) + 1
            elif mn.startswith('s_cbranch') or mn == 's_branch':
                self.kind = 'branch'
                self.target = ops[0]
            elif mn.startswith('s_cmp') or mn in ('s_waitcnt', 's_barrier', 's_sleep', 's_setprio', 's_endpgm', 's_bitcmp1_b32', 's_bitcmp0_b32'):
                self.rd = set().union(*R) if R else set()
            else:
                self.wr = R[0] if R else set()
                self.rd = set().union(*R[1:]) if len(R) > 1 else set()
                if 'saveexec' in mn:
                    self.wr = self.wr | regs_of('exec')
        else:
            raise ValueError('unknown instruction ' + text)


VALU_KINDS = ('valu', 'trans', 'permlane', 'readlane')


def isv(r):
    return r[0] in 'va'


def need(p, c):
    n = 0
    if p.kind in VALU_KINDS:
        wv = {r for r in p.wr if isv(r)}
        ws = {r for r in p.wr if r[0] == 's'}
        if wv & c.rd:
            if c.kind == 'mfma':
                n = max(n, 2)
            if c.kind == 'permlane' or c.dpp:
                n = max(n, 2)
            if c.kind == 'readlane':
                n = max(n, 1)
            if p.kind == 'trans' and c.kind != 'trans':
                n = max(n, 1)
        if ws & c.rd:
            if c.kind in VALU_KINDS or c.kind == 'mfma':
                n = max(n, 2)
                if c.mn.startswith('v_div_fmas'):
                    n = max(n, 4)
            if c.kind == 'vmem':
                n = max(n, 5)
            if c.kind in ('salu', 'branch'):
                n = max(n, 1)
        if ws & c.lanesel:
            n = max(n, 4)
    if p.kind == 'mfma':
        P = p.passes
        big = 8 if P == 4 else 12
        if c.kind == 'mfma':
            if p.wr & c.srcA:
                n = max(n, big)
            if p.wr & c.srcC:
                if p.wr == c.srcC and P == c.passes:
                    pass
                else:
                    n = max(n, 6 if P == 4 else 10)
            elif p.wr & c.wr:
                n = max(n, 6 if P == 4 else 10)
        elif c.kind in VALU_KINDS or c.kind in ('vmem', 'ds'):
            if p.wr & (c.rd | c.wr):
                n = max(n, big)
            if c.kind in VALU_KINDS and (p.srcC & c.wr):
                n = max(n, 3 if P == 4 else 7)
    if p.kind == 'vmem' and p.wide and (p.sdata & c.wr):
        n = max(n, 2 if c.kind in VALU_KINDS else 1)
    if p.kind == 'salu' and ('s', 124) in p.wr and (c.isldsdma or c.mn.startswith('s_movrel')):
        n = max(n, 1)
    return n


WINDOW = 14


class Asm:
    def __init__(self):
        self.ins = []

    def __call__(self, text):
        for line in text.split('\n'):
            line = line.strip()
            if line:
                self.ins.append(Ins(line))

    def label(self, name):
        self.ins.append(Ins(name + ':'))

    def _deficit(self, hist, c, nb=None):
        worst = 0
        n_h = len(hist)
        dist = 0
        for idx in range(n_h - 1, -1, -1):
            if dist >= WINDOW:
                break
            p = hist[idx]
            dist += p.states
            if nb is not None and idx >= nb:
                continue
            n = need(p, c)
            if n <= 0:
                continue
            t = 0
            lastm = None
            seq = hist[idx:] + [c]
            for qi, q in enumerate(seq):
                if q.kind == 'mfma' and lastm is not None:
                    t = max(t, lastm)
                if qi == len(seq) - 1:
                    break
                if q.kind == 'mfma':
                    lastm = t + q.passes
                t += q.states
            d = t - p.states
            if n - d > worst:
                worst = n - d
        return worst

    def fix(self):
        changed = True
        it = 0
        while changed:
            changed = False
            it += 1
            assert it < 50
            out = []
            hist = []
            for c in self.ins:
                if c.kind in ('none', 'label'):
                    out.append(c)
                    continue
                tot_n = 0
                while True:
                    h2 = hist + [Ins('s_nop %d' % (tot_n - 1))] if tot_n else hist
                    d = self._deficit(h2, c)
                    if d <= 0:
                        break
                    tot_n += d
                assert tot_n <= 16
                if tot_n:
                    nop = Ins('s_nop %d' % (tot_n - 1))
                    out.append(nop)
                    hist.append(nop)
                out.append(c)
                hist.append(c)
                if c.mn in ('s_branch', 's_endpgm'):
                    hist = []
                hist = hist[-(WINDOW + 2):]
            self.ins = out
            pos = {c.label: i for i, c in enumerate(self.ins) if c.kind == 'label'}
            inserts = []
            for i, c in enumerate(self.ins):
                if c.kind != 'branch':
                    continue
                assert c.target in pos, c.target
                hist = []
                j = i
                tot = 0
                while j >= 0 and tot < WINDOW + 2:
                    p = self.ins[j]
                    if p.kind not in ('none', 'label'):
                        if j != i and p.mn in ('s_branch', 's_endpgm'):
                            break
                        hist.insert(0, p)
                        tot += p.states
                    j -= 1
                nb = len(hist)
                k = pos[c.target]
                tot = 0
                worst = 0
                h = list(hist)
                while k < len(self.ins) and tot < WINDOW:
                    q = self.ins[k]
                    if q.kind not in ('none', 'label'):
                        worst = max(worst, self._deficit(h, q, nb))
                        h.append(q)
                        tot += q.states
                        if q.mn in ('s_branch', 's_endpgm'):
                            break
                    k += 1
                if worst > 0:
                    inserts.append((i, worst))
            for i, w in reversed(inserts):
                self.ins.insert(i, Ins('s_nop %d' % (w - 1)))
                changed = True

    def text(self):
        out = []
        for c in self.ins:
            if c.kind == 'label' or c.text.startswith('.'):
                out.append(c.text)
            else:
                out.append('  ' + c.text)
        return '\n'.join(out) + '\n'


def v(i, n=1):
    return 'v%d' % i if n == 1 else 'v[%d:%d]' % (i, i + n - 1)


def a(i, n=1):
    return 'a%d' % i if n == 1 else 'a[%d:%d]' % (i, i + n - 1)


def s(i, n=1):
    return 's%d' % i if n == 1 else 's[%d:%d]' % (i, i + n - 1)


def r(i, n=1):
    if i >= 256:
        return a(i - 256, n)
    assert i + n <= 256
    return v(i, n)
```

```python
NSEG = 64
TILE = 28672
def _al(x, a=4096): return (x + a - 1) // a * a
off = 0
def alloc(n):
    global off
    o = off
    off = _al(off + n)
    return o
CTL = alloc(65536)
MI = alloc(NSEG * 7168)
LIS = 10240
LI = alloc(NSEG * LIS)
MX = alloc(16 * TILE)
SENT_BEG, SENT_END = MI + 7168, off
XF = alloc(NSEG * TILE)
WF = alloc(504 * TILE)
W2F = alloc(56 * TILE)
QF = alloc(NSEG * 16 * TILE)
UF = alloc(NSEG * 16 * TILE)
HF = alloc(NSEG * 4 * TILE)
YF = alloc(NSEG * 8 * 14 * 1024)
PX = alloc(NSEG * 16 * 2048)
PM = alloc(NSEG * 8 * 1024)
FF = alloc(4 * NSEG * 14 * 4096)
DBG = alloc(1 << 20)
WS_USED = off
WS_SIZE = 268435456
assert WS_USED <= WS_SIZE
def ctl(i): return CTL + i * 128
C_SEG = 0
C_U = 0
C_Q = 64
C_H = 128
C_P = 192
C_F = 256
C_FP = 320
C_FM = 336
C_Y = 384
C_ROLE = 400
C_XQ = 401
C_GQ = 408
C_T = 409
U_TARGET = 28
if __name__ == '__main__':
    for k, v in list(globals().items()):
        if isinstance(v, int): print(k, hex(v), v)
```

```python
import os, struct
from asm import *
from util import *
import layout as L
import wrap

WS, RO, CO, XS, M0S = 's[8:11]', 's[12:15]', 's[16:19]', 's[20:23]', 's[24:27]'
WB = 448 * 4096 * 2
SC = ' sc1' if os.environ.get('PSC', '1') == '1' else ''
PREP_LDS = 7 * 16384


def f32(x):
    return '0x%08x' % struct.unpack('<I', struct.pack('<f', x))[0]


def prep_kernel():
    A = Asm()
    sW, sH, sHALF, sCT, sGW, sW1, sROW, sOWN, sT0, sT1, sT2, sOUT, sMAT, sC = range(28, 42)
    sC2 = 42
    DA, RA = 8, 16
    XR, F, T = 24, 32, 48
    COL, ACC, RW, EP = 64, 128, 160, 192
    A('s_cmp_ge_u32 s2, 256')
    A('s_cbranch_scc1 P_quit')
    wrap.srd(A, 8, 96, L.WS_SIZE)
    wrap.srd(A, 20, 0, 2048 * 448 * 2)
    wrap.srd(A, 24, 8, 8 * 448 * 2)
    A('s_bfe_u32 s%d, s2, 0x10006' % sMAT)
    A('s_cmp_eq_u32 s%d, 0' % sMAT)
    A('s_cbranch_scc0 P_srdB')
    wrap.srd(A, 12, 16, WB)
    wrap.srd(A, 16, 24, WB)
    A('s_branch P_srd')
    A.label('P_srdB')
    wrap.srd(A, 12, 32, WB)
    wrap.srd(A, 16, 40, WB)
    A.label('P_srd')
    A('v_and_b32 v1, 63, v0')
    A('v_lshrrev_b32 v2, 6, v0')
    A('v_readfirstlane_b32 s%d, v2' % sW)
    A('s_and_b32 s%d, s2, 7' % sH)
    A('s_lshl_b32 s%d, s%d, 1' % (sH, sH))
    A('s_lshr_b32 s%d, s2, 7' % sT0)
    A('s_add_u32 s%d, s%d, s%d' % (sH, sH, sT0))
    A('s_bfe_u32 s%d, s2, 0x10003' % sHALF)
    A('s_bfe_u32 s%d, s2, 0x20004' % sT0)
    A('s_lshl_b32 s%d, s%d, 2' % (sCT, sT0))
    A('s_cmp_eq_u32 s%d, 3' % sT0)
    A('s_cselect_b32 s%d, 11, s%d' % (sCT, sCT))
    A('s_add_u32 s%d, s%d, s%d' % (sCT, sCT, sW))
    A('s_lshr_b32 s%d, s%d, 1' % (sT0, sT0))
    A('s_add_u32 s%d, s%d, s%d' % (sC, sT0, sW))
    A('s_lshl_b32 s%d, s2, 2' % sGW)
    A('s_add_u32 s%d, s%d, s%d' % (sGW, sGW, sW))
    A('v_and_b32 v2, 31, v1')
    A('v_lshrrev_b32 v3, 5, v1')
    A('v_mul_u32_u24 v4, 896, v3')
    A('v_lshl_add_u32 v4, v2, 4, v4')
    A('v_mov_b32 v5, 0x%x' % OOB)
    A('v_cmp_gt_u32 s[44:45], 28, v2')
    A('v_cndmask_b32 v4, v5, v4, s[44:45]')
    A('s_mul_i32 s%d, s%d, 1792' % (sT0, sGW))
    A('v_bfe_u32 v6, v1, 2, 3')
    A('v_mul_u32_u24 v6, 896, v6')
    A('v_and_b32 v7, 3, v1')
    A('v_lshl_add_u32 v6, v7, 3, v6')
    A('v_lshl_add_u32 v6, v3, 2, v6')
    A('s_lshl_b32 s%d, s%d, 5' % (sT1, sGW))
    A('s_cmp_lt_u32 s%d, 28' % sGW)
    A('s_cselect_b32 s%d, s%d, 0x%x' % (sT1, sT1, OOB))
    A('s_waitcnt lgkmcnt(0)')
    A('buffer_load_dwordx4 %s, v4, %s, s%d offen' % (v(XR, 4), XS, sT0))
    A('buffer_load_dwordx4 %s, v4, %s, s%d offen offset:448' % (v(XR + 4, 4), XS, sT0))
    A('buffer_load_dword v7, v6, %s, s%d offen' % (M0S, sT1))
    A('s_and_b32 s%d, s%d, 1' % (sW1, sW))
    A('s_lshl_b32 s%d, s%d, 2' % (sW1, sW1))
    for k in range(8):
        A('s_xor_b32 s%d, s%d, %d' % (sT0, sW1, k))
        A('s_lshl_b32 s%d, s%d, 1' % (sT0, sT0))
        A('v_add_u32 v5, s%d, v3' % sT0)
        A('v_xor_b32 v5, v5, v2')
        A('v_lshlrev_b32 v5, 4, v5')
        A('v_lshl_add_u32 v%d, v3, 13, v5' % (DA + k))
    A('s_mul_i32 s%d, s%d, %d' % (sROW, sHALF, 224 * 8192))
    A('s_lshl_b32 s%d, s%d, 9' % (sT0, sH))
    A('s_add_u32 s%d, s%d, s%d' % (sROW, sROW, sT0))
    A('s_add_u32 s%d, s%d, 3' % (sOWN, sW))
    A('s_lshl_b32 s%d, s%d, 4' % (sT0, sMAT))
    A('s_add_u32 s%d, s%d, s%d' % (sT0, sT0, sH))
    A('s_mul_i32 s%d, s%d, 14' % (sT0, sT0))
    A('s_add_u32 s%d, s%d, s%d' % (sT0, sT0, sCT))
    A('s_mul_i32 s%d, s%d, %d' % (sOUT, sT0, L.TILE))
    A('s_mul_i32 s%d, s%d, 14336' % (sT0, sHALF))
    A('s_add_u32 s%d, s%d, s%d' % (sOUT, sOUT, sT0))
    A('s_add_u32 s%d, s%d, %d' % (sOUT, sOUT, L.WF))
    A('s_cmp_eq_u32 s%d, 4' % sC)
    A('s_cbranch_scc1 P_idle')
    A('s_cmp_eq_u32 s%d, 0' % sMAT)
    A('s_cbranch_scc0 P_B')

    def dma_q(V, r):
        for k in range(4):
            A('s_lshl_b32 s%d, s%d, 2' % (sT0, sW))
            A('s_add_u32 s%d, s%d, %d' % (sT0, sT0, 16 * r + k))
            A('s_lshl_b32 m0, s%d, 10' % sT0)
            A('s_lshl_b32 s%d, s%d, 14' % (sT0, sT0))
            A('s_add_u32 s%d, s%d, s%d' % (sT0, sT0, sROW))
            V('buffer_load_dwordx4 v%d, %s, s%d offen lds' % (DA + k, RO, sT0), 't%d' % r)

    def dma_own(V):
        A('s_lshl_b32 s%d, s%d, 4' % (sT1, sOWN))
        for hi in range(2):
            for k in range(8):
                A('s_xor_b32 s%d, s%d, %d' % (sT0, sW1, k + 8 * hi))
                A('s_add_u32 s%d, s%d, s%d' % (sT0, sT0, sT1))
                A('s_lshl_b32 m0, s%d, 10' % sT0)
                A('s_lshl_b32 s%d, s%d, 14' % (sT0, sT0))
                A('s_add_u32 s%d, s%d, s%d' % (sT0, sT0, sROW))
                V('buffer_load_dwordx4 v%d, %s, s%d offen lds' % (DA + k, RO, sT0), 't3')

    def ln(V):
        V.wait('x')
        for k in range(8):
            A('v_lshlrev_b32 v%d, 16, v%d' % (F + 2 * k, XR + k))
            A('v_and_b32 v%d, 0xffff0000, v%d' % (F + 2 * k + 1, XR + k))
        for k in range(4):
            A('v_pk_add_f32 %s, %s, %s' % (v(T + 2 * k, 2), v(F + 4 * k, 2), v(F + 4 * k + 2, 2)))
        A('v_pk_add_f32 %s, %s, %s' % (v(T, 2), v(T, 2), v(T + 2, 2)))
        A('v_pk_add_f32 %s, %s, %s' % (v(T + 4, 2), v(T + 4, 2), v(T + 6, 2)))
        A('v_pk_add_f32 %s, %s, %s' % (v(T, 2), v(T, 2), v(T + 4, 2)))
        A('v_add_f32 v%d, v%d, v%d' % (T, T, T + 1))
        red32(A, 'v_add_f32', T, T + 1)
        A('v_mul_f32 v%d, %s, v%d' % (T, f32(1.0 / 448), T))
        q = T + 2
        A('v_mov_b32 v%d, 0' % q)
        A('v_mov_b32 v%d, 0' % (q + 1))
        for k in range(8):
            d = T + 4 + 2 * (k & 1)
            A('v_pk_add_f32 %s, %s, %s op_sel_hi:[1,0] neg_lo:[0,1] neg_hi:[0,1]' % (v(d, 2), v(F + 2 * k, 2), v(T, 2)))
            A('v_pk_fma_f32 %s, %s, %s, %s' % (v(q, 2), v(d, 2), v(d, 2), v(q, 2)))
        A('v_add_f32 v%d, v%d, v%d' % (q, q, q + 1))
        A('v_cndmask_b32 v%d, 0, v%d, s[44:45]' % (q, q))
        red32(A, 'v_add_f32', q, q + 1)
        A('v_mul_f32 v%d, %s, v%d' % (q, f32(1.0 / 448), q))
        A('v_cvt_pk_bf16_f32 v%d, v%d, v%d' % (q + 1, T, q))
        A('v_lshlrev_b32 v%d, 16, v%d' % (T, q + 1))
        A('v_and_b32 v%d, 0xffff0000, v%d' % (q, q + 1))
        A('v_add_f32 v%d, %s, v%d' % (q, f32(1e-5), q))
        A('v_cvt_pk_bf16_f32 v%d, v%d, v%d' % (q, q, q))
        A('v_lshlrev_b32 v%d, 16, v%d' % (q, q))
        A('v_sqrt_f32 v%d, v%d' % (q, q))
        A('v_cvt_pk_bf16_f32 v%d, v%d, v%d' % (q, q, q))
        A('v_lshlrev_b32 v%d, 16, v%d' % (q, q))
        rc = T + 4
        A('v_rcp_f32 v%d, v%d' % (rc, q))
        for k in range(8):
            x = v(F + 2 * k, 2)
            a1, a2 = T + 6 + 4 * (k & 1), T + 8 + 4 * (k & 1)
            A('v_pk_add_f32 %s, %s, %s op_sel_hi:[1,0] neg_lo:[0,1] neg_hi:[0,1]' % (x, x, v(T, 2)))
            A('v_cvt_pk_bf16_f32 v%d, v%d, v%d' % (a1, F + 2 * k, F + 2 * k + 1))
            A('v_lshlrev_b32 v%d, 16, v%d' % (F + 2 * k, a1))
            A('v_and_b32 v%d, 0xffff0000, v%d' % (F + 2 * k + 1, a1))
            A('v_pk_mul_f32 %s, %s, %s op_sel_hi:[1,0]' % (v(a1, 2), x, v(rc, 2)))
            A('v_pk_fma_f32 %s, %s, %s, %s op_sel_hi:[1,0,1] neg_lo:[1,0,0] neg_hi:[1,0,0]' % (v(a2, 2), v(a1, 2), v(q, 2), x))
            A('v_pk_fma_f32 %s, %s, %s, %s op_sel_hi:[1,0,1]' % (v(a1, 2), v(a2, 2), v(rc, 2), v(a1, 2)))
            A('v_cvt_pk_bf16_f32 v%d, v%d, v%d' % (XR + k, a1, a1 + 1))
        A('v_lshlrev_b32 v4, 9, v2')
        A('v_lshl_add_u32 v4, v3, 4, v4')
        A('v_mov_b32 v5, 0x%x' % OOB)
        A('v_cndmask_b32 v4, v5, v4, s[44:45]')
        A('s_lshr_b32 s%d, s%d, 4' % (sT0, sGW))
        A('s_mul_i32 s%d, s%d, %d' % (sT0, sT0, L.TILE))
        A('s_and_b32 s%d, s%d, 15' % (sT1, sGW))
        A('s_lshl_b32 s%d, s%d, 5' % (sT1, sT1))
        A('s_add_u32 s%d, s%d, s%d' % (sT0, sT0, sT1))
        A('s_add_u32 s%d, s%d, %d' % (sT0, sT0, L.XF))
        A('s_add_u32 s%d, s%d, 14336' % (sT1, sT0))
        V('buffer_store_dwordx4 %s, v4, %s, s%d offen%s' % (v(XR, 4), WS, sT0, SC))
        V('buffer_store_dwordx4 %s, v4, %s, s%d offen%s' % (v(XR + 4, 4), WS, sT1, SC))
        A('v_lshlrev_b32 v4, 4, v1')
        A('s_cmp_lt_u32 s%d, 64' % sGW)
        A('s_cselect_b32 s%d, 0, -1' % sT0)
        for k in range(4):
            A('v_mov_b32 v%d, s%d' % (F + k, sT0))
            A('v_mov_b32 v%d, -1' % (F + 4 + k))
        A('s_lshl_b32 s%d, s%d, 10' % (sT0, sGW))
        A('s_add_u32 s%d, s%d, 0x100000' % (sT1, sT0))
        A('s_sub_u32 s%d, s%d, 64' % (sT2, sGW))
        A('s_cmp_lt_u32 s%d, 7' % sT2)
        A('s_cselect_b32 s%d, 0x%x, s%d' % (sT0, OOB, sT0))
        A('s_cmp_ge_u32 s%d, 0x%x' % (sT1, L.SENT_END))
        A('s_cselect_b32 s%d, 0x%x, s%d' % (sT1, OOB, sT1))
        V('buffer_store_dwordx4 %s, v4, %s, s%d offen%s' % (v(F, 4), WS, sT0, SC))
        V('buffer_store_dwordx4 %s, v4, %s, s%d offen%s' % (v(F + 4, 4), WS, sT1, SC))
        A('v_min_u32 v7, -2, v7')
        A('v_lshlrev_b32 v6, 2, v1')
        A('s_lshl_b32 s%d, s%d, 8' % (sT0, sGW))
        A('s_add_u32 s%d, s%d, %d' % (sT0, sT0, L.MI))
        A('s_cmp_lt_u32 s%d, 28' % sGW)
        A('s_cselect_b32 s%d, s%d, 0x%x' % (sT0, sT0, OOB))
        V('buffer_store_dword v7, v6, %s, s%d offen%s' % (WS, sT0, SC))

    def newvm():
        V = VM(A)
        V.ops += ['x', 'x', 'x']
        return V

    def compute(V, mat):
        pi_lane(A, 4, 2, 5)
        A('v_and_b32 v5, 15, v4')
        A('v_xor_b32 v5, v5, v3')
        for k in range(8):
            A('v_xor_b32 v6, %d, v5' % (2 * k))
            A('v_lshlrev_b32 v6, 4, v6')
            A('v_lshl_add_u32 v%d, v4, 9, v6' % (RA + k))
        A('v_lshlrev_b32 v4, 4, v1')
        if mat == 0:
            c = f32(0.0625 * 1.4426950408889634)
            A('s_mov_b32 s%d, %s' % (sC2, c))
            A('s_mov_b32 s%d, %s' % (sC2 + 1, c))
        steps = [(r_, ke) for r_ in range(7) for ke in range(16)]
        LA = 6
        nread = 0

        def rd(i):
            r_, ke = steps[i]
            if ke == 0 and r_ <= 3:
                V.wait('t%d' % r_)
                A('s_barrier')
            if r_ == 4 and ke < 8:
                A('v_add_u32 v%d, 0x10000, v%d' % (RA + ke, RA + ke))
            A('ds_read_b128 %s, v%d offset:%d' % (v(RW + 4 * (i % 8), 4), RA + (ke & 7), (r_ & 3) * 16384 + (ke >> 3) * 256))

        def epi(r_):
            acc = ACC + 16 * (r_ & 1)
            out = []
            for hf in range(2):
                for k in range(4):
                    x = acc + 8 * hf + 2 * k
                    if mat == 0:
                        out.append('v_pk_mul_f32 %s, %s, s[%d:%d]' % (v(x, 2), v(x, 2), sC2, sC2 + 1))
                    out.append('v_cvt_pk_bf16_f32 v%d, v%d, v%d' % (EP + 4 * hf + k, x, x + 1))
                out.append(('st', 'buffer_store_dwordx4 %s, v4, %s, s%d offen offset:%d%s' % (v(EP + 4 * hf, 4), WS, sOUT, hf * 1024, SC)))
            out.append('s_add_u32 s%d, s%d, 2048' % (sOUT, sOUT))
            return out
        pend = []

        def drain(n):
            while pend and n > 0:
                x = pend.pop(0)
                if isinstance(x, tuple):
                    V(x[1])
                else:
                    A(x)
                n -= 1
        for i in range(LA):
            rd(i)
        for i, (r_, ke) in enumerate(steps):
            acc = v(ACC + 16 * (r_ & 1), 16)
            ahead = min(len(steps) - 1, i + LA - 1) - i
            A('s_waitcnt lgkmcnt(%d)' % ahead)
            A('%s %s, %s, %s, %s' % (MF32, acc, v(RW + 4 * (i % 8), 4), v(COL + 4 * ke, 4), acc if ke else '0'))
            if i + LA < len(steps):
                rd(i + LA)
            if ke == 2 and r_ > 0:
                pend += epi(r_ - 1)
            drain(3)
        pend += epi(6)
        drain(100)
        A('s_endpgm')

    V = newvm()
    pi_lane(A, 4, 2, 5)
    A('v_lshlrev_b32 v4, 13, v4')
    A('v_lshl_add_u32 v4, v3, 4, v4')
    A('s_lshl_b32 s%d, s%d, 18' % (sT0, sCT))
    A('s_lshl_b32 s%d, s%d, 9' % (sT1, sH))
    A('s_add_u32 s%d, s%d, s%d' % (sT2, sT0, sT1))
    dma_q(V, 0)
    for ke in range(16):
        V('buffer_load_dwordx4 %s, v4, %s, s%d offen offset:%d' % (v(COL + 4 * ke, 4), CO, sT2, ke * 32), 't0')
    dma_q(V, 1)
    dma_q(V, 2)
    dma_own(V)
    ln(V)
    compute(V, 0)
    A.label('P_B')
    V = newvm()
    A('v_lshrrev_b32 v4, 2, v1')
    A('v_mul_u32_u24 v4, 896, v4')
    A('v_and_b32 v5, 3, v1')
    A('v_lshl_add_u32 v4, v5, 4, v4')
    A('s_mul_i32 s%d, s%d, %d' % (sT2, sH, 256 * 896))
    A('s_lshl_b32 s%d, s%d, 6' % (sT0, sCT))
    A('s_add_u32 s%d, s%d, s%d' % (sT2, sT2, sT0))
    A('s_lshl_b32 s%d, s%d, 14' % (sT1, sOWN))
    for n in range(16):
        A('s_add_u32 m0, s%d, %d' % (sT1, n * 1024))
        V('buffer_load_dwordx4 v4, %s, s%d offen lds' % (CO, sT2), 'col')
        A('s_add_u32 s%d, s%d, %d' % (sT2, sT2, 16 * 896))
    dma_q(V, 0)
    dma_q(V, 1)
    dma_q(V, 2)
    ln(V)
    tr_addr(A, 4, 5)
    A('s_lshl_b32 s%d, s%d, 14' % (sT1, sOWN))
    A('v_add_u32 v4, s%d, v4' % sT1)
    V.wait('col')
    for ke in range(16):
        for u in range(2):
            A('ds_read_b64_tr_b16 %s, v4 offset:%d' % (v(COL + 4 * ke + 2 * u, 2), ke * 1024 + u * 256))
    A('s_waitcnt lgkmcnt(0)')
    dma_own(V)
    compute(V, 1)
    A.label('P_idle')
    V = newvm()
    for r_ in range(3):
        dma_q(V, r_)
    dma_own(V)
    ln(V)
    for r_ in range(4):
        V.wait('t%d' % r_)
        A('s_barrier')
    A.label('P_quit')
    A('s_endpgm')
    return A


if __name__ == '__main__':
    import sys
    A = prep_kernel()
    txt = wrap.build([('prep_kernel', 256, 256, PREP_LDS)], [('prep_kernel', A, 256, 256)])
    open(sys.argv[1], 'w').write(txt)
    print(len(txt))
```

```python
from asm import *
import layout as L

SRD = 's[8:11]'
S_ROLE, S_W, S_STEP, S_MODE = 12, 13, 14, 15
S_MI, S_XF, S_LI, S_PF, S_PUB = 16, 17, 18, 19, 20
S_T0, S_T1, S_T2, S_T3 = 21, 22, 23, 24
S_SPIN = 25
S_CNT = 26
S_RDY = 27
S_XB = 28
S_MW = 29
S_YS = 30
S_EXP = 31
S_HI8 = 32
S_PH = 34
S_TS = 46
import os
X = set(os.environ.get('X', '').split(','))
SPIN = int(os.environ.get('RSPIN', 1 << 18))
VCOST = int(os.environ.get('VC', 2))
TOUCH_LATE = False
A_FLAG = int(os.environ.get('AF', 2))
A_BAR = int(os.environ.get('AB', 3))
B_FLAG = int(os.environ.get('BF', 0))
B_DELAY = int(os.environ.get('BD', 4))
TOUCH_LANES = 56
OOB = 0x7f000000

SMF = 'v_smfmac_f32_16x16x64_bf16'
MF16 = 'v_mfma_f32_16x16x32_bf16'


def cost(f):
    if callable(f):
        return 2
    if f.startswith('s_'):
        return 1
    return VCOST


def sched(A, mf, fill, per=2):
    fi = 0

    def emit(f):
        if callable(f):
            f(A)
        else:
            A(f)
    for k, m in enumerate(mf):
        last = -1
        for j in range(fi, len(fill)):
            f = fill[j]
            if isinstance(f, tuple) and f[0] == 'by' and f[1] <= k:
                last = j
        while fi <= last:
            f = fill[fi]
            fi += 1
            if isinstance(f, tuple):
                assert f[0] == 'by' or f[1] < k, (f, k)
                continue
            emit(f)
        A(m)
        n = 0
        while fi < len(fill):
            f = fill[fi]
            if isinstance(f, tuple):
                if f[0] == 'at' and k < f[1]:
                    break
                fi += 1
                continue
            c = cost(f)
            if n + c > per and n > 0:
                break
            emit(f)
            fi += 1
            n += c
    for f in fill[fi:]:
        if not isinstance(f, tuple):
            emit(f)


class Slow:
    def __init__(self):
        self.items = []

    def store(self, A, text, tag):
        A('s_cbranch_scc1 %s_slow' % tag)
        A(text)
        A.label(tag + '_done')
        self.items.append((tag + '_slow', text + ' sc1', tag + '_done'))

    def emit(self, A):
        for lab, text, back in self.items:
            A.label(lab)
            A(text)
            A('s_branch %s' % back)


def check(regs, t):
    out = []
    regs = list(regs)
    out.append('v_max3_u32 v%d, v%d, v%d, v%d' % (t, regs[0], regs[1], regs[2]))
    rest = regs[3:]
    while len(rest) >= 2:
        out.append('v_max3_u32 v%d, v%d, v%d, v%d' % (t, t, rest[0], rest[1]))
        rest = rest[2:]
    if rest:
        out.append('v_max_u32 v%d, v%d, v%d' % (t, t, rest[0]))
    out.append('v_cmp_eq_u32 vcc, -1, v%d' % t)
    return out


NST = 12
TIMER = 's_memtime'


def stamp(A, slot):
    A('%s s[%d:%d]' % (TIMER, 48 + 2 * slot, 49 + 2 * slot))


def stf(slot):
    return lambda A: stamp(A, slot)


def stamp_flush(A, rolebase):
    A('s_waitcnt lgkmcnt(0)')
    for k in range(NST):
        A('v_writelane_b32 v15, s%d, %d' % (48 + 2 * k, k))
    A('s_add_u32 s%d, s%d, %d' % (S_T0, S_ROLE, rolebase))
    A('s_lshl_b32 s%d, s%d, 2' % (S_T0, S_T0))
    A('s_add_u32 s%d, s%d, s%d' % (S_T0, S_T0, S_W))
    A('s_lshl_b32 s%d, s%d, 6' % (S_T0, S_T0))
    A('s_add_u32 s%d, s%d, s%d' % (S_T0, S_T0, S_STEP))
    A('s_lshl_b32 s%d, s%d, 6' % (S_T0, S_T0))
    A('s_add_u32 s%d, s%d, %d' % (S_T0, S_T0, L.DBG))
    A('s_mov_b64 exec, 0xffff')
    A('buffer_store_dword v15, v14, %s, s%d offen' % (SRD, S_T0))
    A('s_mov_b64 exec, -1')


V_P0, V_P1, V_L16 = 6, 7, 8


def common_init(A):
    A('v_and_b32 v1, 63, v0')
    A('v_lshrrev_b32 v2, 6, v0')
    A('v_readfirstlane_b32 s%d, v2' % S_W)
    A('v_and_b32 v2, 15, v1')
    A('v_lshrrev_b32 v3, 4, v1')
    A('v_lshrrev_b32 v6, 1, v3')
    A('v_lshlrev_b32 v4, 10, v6')
    A('v_and_b32 v6, 1, v3')
    A('v_lshl_add_u32 v4, v6, 9, v4')
    A('v_lshl_add_u32 v4, v2, 4, v4')
    A('v_mov_b32 v5, 0x4444')
    A('v_mov_b32 v6, 0xeeee')
    A('v_and_b32 v7, 8, v1')
    A('v_cmp_ne_u32 vcc, 0, v7')
    A('v_cndmask_b32 v5, v5, v6, vcc')
    A('v_lshlrev_b32 v14, 2, v1')
    A('v_mov_b32 v15, 0')
    A('s_mov_b32 s%d, %d' % (S_SPIN, SPIN))
    A('s_mov_b32 s%d, 0' % S_STEP)
    A('s_mov_b32 s%d, 0' % S_RDY)
    A('s_mov_b32 s%d, 0' % S_HI8)
    A('s_mov_b32 s%d, 0xff000000' % (S_HI8 + 1))
    for lam in range(7):
        A('s_lshl_b32 s%d, s%d, 1' % (S_T2, S_W))
        A('s_add_u32 s%d, s%d, %d' % (S_T2, S_T2, lam))
        A('s_cmp_ge_u32 s%d, 7' % S_T2)
        A('s_cselect_b32 s%d, 7, 0' % S_T3)
        A('s_sub_u32 s%d, s%d, s%d' % (S_T2, S_T2, S_T3))
        A('s_lshl_b32 s%d, s%d, 10' % (S_PH + lam, S_T2))
    A('v_lshlrev_b32 v%d, 4, v1' % V_L16)
    A('v_add_u32 v%d, s%d, v%d' % (V_P0, S_PH, V_L16))
    A('v_add_u32 v%d, s%d, v%d' % (V_P1, S_PH + 1, V_L16))
    A('s_mov_b32 s%d, %d' % (S_MI, L.MI))
    A('s_mov_b32 s%d, %d' % (S_LI, L.LI))


def refresh_ready(A, tmp):
    A('v_lshlrev_b32 v%d, 7, v1' % tmp)
    A('s_mov_b32 s%d, %d' % (S_T3, L.ctl(L.C_U)))
    A('buffer_load_dword v%d, v%d, %s, s%d offen sc1' % (tmp + 1, tmp, SRD, S_T3))
    A('s_waitcnt vmcnt(0)')
    A('v_cmp_gt_u32 vcc, %d, v%d' % (L.U_TARGET, tmp + 1))
    A('s_ff1_i32_b64 s%d, vcc' % S_RDY)
    A('s_min_u32 s%d, s%d, 64' % (S_RDY, S_RDY))


def wait_mode(A, tag, tmp):
    A('v_mov_b32 v%d, %d' % (tmp, L.ctl(L.C_ROLE)))
    A.label(tag)
    A('buffer_load_dword v%d, v%d, %s, 0 offen sc1' % (tmp + 1, tmp, SRD))
    A('s_sub_u32 s%d, s%d, 1' % (S_SPIN, S_SPIN))
    A('s_cbranch_scc1 abort')
    A('s_waitcnt vmcnt(0)')
    A('v_readfirstlane_b32 s%d, v%d' % (S_MODE, tmp + 1))
    A('s_and_b32 s%d, s%d, 0xffff' % (S_T0, S_MODE))
    A('s_cmp_lt_u32 s%d, 30' % S_T0)
    A('s_cbranch_scc1 %s' % tag)
    A('s_lshr_b32 s%d, s%d, 16' % (S_MODE, S_MODE))


def poll_mem(A, tag, M, t):
    A.label(tag)
    for x in mem_issue(M):
        A(x)
    A('s_sub_u32 s%d, s%d, 1' % (S_SPIN, S_SPIN))
    A('s_cbranch_scc1 abort')
    A('s_waitcnt vmcnt(0)')
    for x in check(range(M, M + 8), t):
        A(x)
    A('s_cbranch_vccnz %s' % tag)


def flag_poll(A, tag, vaddr, F, s_exp, nfl=3, gap=None):
    def ld(k):
        return 'buffer_load_dword v%d, v%d, %s, 0 offen sc1' % (F + k, vaddr, SRD)
    for k in range(nfl):
        A(ld(k))
        if k < nfl - 1:
            for x in (gap[k] if gap else ['s_nop 15']):
                A(x)
    A.label(tag)
    for k in range(nfl):
        A('s_waitcnt vmcnt(%d)' % (nfl - 1))
        A('v_cmp_gt_u32 vcc, s%d, v%d' % (s_exp, F + k))
        A('s_cbranch_vccz %s_ok' % tag)
        A(ld(k))
    A('s_sub_u32 s%d, s%d, 1' % (S_SPIN, S_SPIN))
    A('s_cbranch_scc0 %s' % tag)
    A('s_branch abort')
    A.label(tag + '_ok')


def mem_issue(R):
    return ['buffer_load_dwordx4 %s, v%d, %s, s%d offen sc1' % (v(R, 4), V_P0, SRD, S_MI),
            'buffer_load_dwordx4 %s, v%d, %s, s%d offen sc1' % (v(R + 4, 4), V_P1, SRD, S_MI)]


def role_A(A, dbg=False):
    M = 16
    T = 44
    SX = 72
    SM = 80
    XA = [84, 92, 120, 128]
    CV = 100
    TC = 104
    V_MC, V_MC2, V_TW, V_TR, V_LW = 9, 10, 11, 12, 13
    V_SW, V_SW2, V_SR, V_PS, V_XG, V_XG3 = 105, 106, 107, 108, 109, 110
    Z = 112
    V_FL, V_FS, V_FV = 3, 0, 4
    AD = {2: 2, 3: 111, 4: 116, 5: 117, 6: 118}
    LDS_M = 0
    LDS_T = 8192
    LDS_S = 28672
    LDS_W = 38912
    GT = T
    INL = [(6, 1), (3, 6)]
    regmap = {}
    k = 0
    for t in range(7):
        for lam in range(7):
            if (t, lam) in INL:
                continue
            regmap[(t, lam)] = 256 + 8 * k if k < 32 else 136 + 8 * (k - 32)
            k += 1
    assert k == 47

    slow = Slow()
    A.label('roleA')
    common_init(A)
    n = 0
    for t in range(7):
        A('s_mul_i32 s%d, s%d, 7' % (S_T2, S_W))
        A('s_add_u32 s%d, s%d, %d' % (S_T2, S_T2, t))
        A('s_and_b32 s%d, s%d, 1' % (S_T3, S_T2))
        A('s_lshl_b32 s%d, s%d, 8' % (S_T3, S_T3))
        A('s_lshr_b32 s%d, s%d, 1' % (S_T2, S_T2))
        A('s_mul_i32 s%d, s%d, 14' % (S_CNT, S_ROLE))
        A('s_add_u32 s%d, s%d, s%d' % (S_T2, S_T2, S_CNT))
        A('s_mul_i32 s%d, s%d, %d' % (S_T2, S_T2, L.TILE))
        A('s_add_u32 s%d, s%d, s%d' % (S_T2, S_T2, S_T3))
        A('s_add_u32 s%d, s%d, %d' % (S_T2, S_T2, L.WF))
        for lam in range(7):
            A('s_lshl_b32 s%d, s%d, 2' % (S_T3, S_PH + lam))
            A('s_add_u32 s%d, s%d, s%d' % (S_T3, S_T2, S_T3))
            w = regmap[(t, lam)] if (t, lam) in regmap else M + 8 * INL.index((t, lam))
            for q in range(2):
                A('buffer_load_dwordx4 %s, v4, %s, s%d offen offset:%d' % (r(w + 4 * q, 4), SRD, S_T3, q * 2048))
                n += 1
                if n % 16 == 0:
                    A('s_waitcnt vmcnt(32)')
    t0, t1 = Z, Z + 1
    A('s_lshl_b32 s%d, s%d, 12' % (S_T2, S_W))
    A('s_add_u32 s%d, s%d, %d' % (S_T2, S_T2, LDS_W))
    A('v_add_u32 v%d, s%d, v%d' % (V_LW, S_T2, V_L16))
    A('s_mul_i32 s%d, s%d, 1792' % (S_T2, S_W))
    A('v_add_u32 v%d, s%d, v%d' % (V_MC, S_T2, V_L16))
    A('v_cmp_eq_u32 vcc, 3, v3')
    A('v_mov_b32 v%d, 1024' % t0)
    A('v_mov_b32 v%d, 768' % t1)
    A('v_cndmask_b32 v%d, v%d, v%d, vcc' % (V_MC2, t0, t1))
    A('v_add_u32 v%d, v%d, v%d' % (V_MC2, V_MC2, V_MC))
    A('v_and_b32 v%d, 3, v2' % t0)
    A('v_bfe_u32 v%d, v2, 2, 1' % t1)
    A('v_lshl_add_u32 v%d, v%d, 3, v%d' % (t0, t1, t0))
    A('v_bfe_u32 v%d, v2, 3, 1' % t1)
    A('v_lshl_add_u32 v%d, v%d, 2, v%d' % (t0, t1, t0))
    A('v_mul_u32_u24 v%d, 40, v%d' % (V_TW, t0))
    A('v_lshl_add_u32 v%d, v3, 3, v%d' % (V_TW, V_TW))
    A('s_mul_i32 s%d, s%d, 5120' % (S_T2, S_W))
    A('s_add_u32 s%d, s%d, %d' % (S_T2, S_T2, LDS_T))
    A('v_add_u32 v%d, s%d, v%d' % (V_TW, S_T2, V_TW))
    A('v_lshrrev_b32 v%d, 2, v2' % t0)
    A('v_lshl_add_u32 v%d, v3, 3, v%d' % (t0, t0))
    A('v_mul_u32_u24 v%d, 40, v%d' % (V_TR, t0))
    A('v_and_b32 v%d, 3, v2' % t0)
    A('v_lshl_add_u32 v%d, v%d, 3, v%d' % (V_TR, t0, V_TR))
    A('v_add_u32 v%d, s%d, v%d' % (V_TR, S_T2, V_TR))
    A('v_mov_b32 v%d, 0' % (Z + 2))
    A('v_mov_b32 v%d, 0' % (Z + 3))
    A('v_lshlrev_b32 v%d, 3, v1' % t0)
    A('v_add_u32 v%d, s%d, v%d' % (t0, S_T2, t0))
    A('ds_write_b64 v%d, %s offset:4480' % (t0, v(Z + 2, 2)))
    A('ds_write_b64 v%d, %s offset:4608' % (t0, v(Z + 2, 2)))
    A('s_mul_i32 s%d, s%d, 7168' % (S_T2, S_W))
    A('v_add_u32 v%d, s%d, v4' % (V_XG, S_T2))
    A('v_mov_b32 v%d, 0x%x' % (t0, OOB))
    A('v_cmp_gt_u32 vcc, 2, v3')
    A('v_cndmask_b32 v%d, v%d, v%d, vcc' % (V_XG3, t0, V_XG))
    A('s_mul_i32 s%d, s%d, 2560' % (S_T2, S_W))
    A('s_add_u32 s%d, s%d, %d' % (S_T2, S_T2, LDS_S))
    A('v_and_b32 v%d, 7, v1' % t0)
    A('v_mul_u32_u24 v%d, 272, v%d' % (V_SW, t0))
    A('v_add_u32 v%d, s%d, v%d' % (V_SW, S_T2, V_SW))
    A('v_lshrrev_b32 v%d, 3, v1' % t0)
    A('v_min_u32 v%d, 5, v%d' % (t0, t0))
    A('v_lshl_add_u32 v%d, v%d, 4, v%d' % (t0, t0, V_SW))
    for k in range(4):
        A('v_mov_b32 v%d, 0xff800000' % (Z + 4 + k))
    A('ds_write_b128 v%d, %s offset:160' % (t0, v(Z + 4, 4)))
    A('v_bfe_u32 v%d, v1, 4, 1' % t0)
    A('v_lshl_add_u32 v%d, v%d, 4, v%d' % (V_SW2, t0, V_SW))
    A('v_bfe_u32 v%d, v1, 3, 1' % t0)
    A('v_lshl_add_u32 v%d, v%d, 3, v%d' % (V_SW2, t0, V_SW2))
    A('v_bfe_u32 v%d, v1, 5, 1' % t1)
    A('v_lshl_add_u32 v%d, v%d, 2, v%d' % (V_SW2, t1, V_SW2))
    A('v_add_u32 v%d, 128, v%d' % (V_SW2, V_SW2))
    A('v_lshl_add_u32 v%d, v%d, 6, v%d' % (V_SW, t0, V_SW))
    A('v_lshl_add_u32 v%d, v3, 4, v%d' % (V_SW, V_SW))
    A('s_mul_i32 s%d, s%d, 544' % (S_T2, S_W))
    A('s_add_u32 s%d, s%d, %d' % (S_T2, S_T2, LDS_S))
    A('v_mul_u32_u24 v%d, 272, v%d' % (V_SR, t1))
    A('v_and_b32 v%d, 31, v1' % t0)
    A('v_lshl_add_u32 v%d, v%d, 3, v%d' % (V_SR, t0, V_SR))
    A('v_add_u32 v%d, s%d, v%d' % (V_SR, S_T2, V_SR))
    A('v_bfe_u32 v%d, v1, 3, 1' % t0)
    A('v_lshlrev_b32 v%d, 8, v%d' % (V_PS, t0))
    A('v_and_b32 v%d, 1, v1' % t0)
    A('v_lshl_add_u32 v%d, v%d, 7, v%d' % (V_PS, t0, V_PS))
    A('v_bfe_u32 v%d, v1, 1, 1' % t0)
    A('v_lshl_add_u32 v%d, v%d, 3, v%d' % (V_PS, t0, V_PS))
    A('v_bfe_u32 v%d, v1, 2, 1' % t0)
    A('v_lshl_add_u32 v%d, v%d, 2, v%d' % (V_PS, t0, V_PS))
    A('s_lshl_b32 s%d, s%d, 9' % (S_T2, S_ROLE))
    A('v_add_u32 v%d, s%d, v%d' % (V_PS, S_T2, V_PS))
    A('s_lshl_b32 s%d, s%d, 7' % (S_T2, S_ROLE))
    A('s_add_u32 s%d, s%d, 8192' % (S_T2, S_T2))
    A('v_lshlrev_b32 v%d, 2, v2' % t0)
    A('v_add_u32 v%d, s%d, v%d' % (t0, S_T2, t0))
    A('v_mov_b32 v%d, 0x%x' % (Z + 2, OOB))
    A('v_cmp_gt_u32 vcc, 4, v2')
    A('v_cndmask_b32 v%d, v%d, v%d, vcc' % (t0, Z + 2, t0))
    A('v_and_b32 v%d, 16, v1' % (Z + 2))
    A('v_cmp_eq_u32 vcc, 0, v%d' % (Z + 2))
    A('v_cndmask_b32 v%d, v%d, v%d, vcc' % (V_PS, t0, V_PS))
    A('s_lshl_b32 s%d, s%d, 5' % (S_T2, S_W))
    A('v_lshl_add_u32 v%d, v%d, 4, v%d' % (V_PS, t1, V_PS))
    A('v_add_u32 v%d, s%d, v%d' % (V_PS, S_T2, V_PS))
    A('s_lshr_b32 s%d, s%d, 5' % (S_T2, S_PH))
    A('s_lshr_b32 s%d, s%d, 5' % (S_T3, S_PH + 1))
    A('v_mov_b32 v%d, s%d' % (t0, S_T2))
    A('v_mov_b32 v%d, s%d' % (t1, S_T3))
    A('v_and_b32 v%d, 8, v1' % (Z + 2))
    A('v_cmp_eq_u32 vcc, 0, v%d' % (Z + 2))
    A('v_cndmask_b32 v%d, v%d, v%d, vcc' % (V_FL, t1, t0))
    A('v_and_b32 v%d, 7, v1' % t0)
    A('v_lshl_add_u32 v%d, v%d, 2, v%d' % (V_FL, t0, V_FL))
    A('s_lshl_b32 s%d, s%d, 8' % (S_T2, S_ROLE))
    A('s_add_u32 s%d, s%d, %d' % (S_T2, S_T2, L.ctl(L.C_FM)))
    A('v_add_u32 v%d, s%d, v%d' % (V_FL, S_T2, V_FL))
    A('s_lshl_b32 s%d, s%d, 2' % (S_T2, S_ROLE))
    A('s_add_u32 s%d, s%d, %d' % (S_T2, S_T2, L.ctl(L.C_FP)))
    A('v_cmp_gt_u32 vcc, 14, v0')
    A('v_lshlrev_b32 v%d, 7, v1' % V_FS)
    A('v_add_u32 v%d, s%d, v%d' % (V_FS, S_T2, V_FS))
    A('v_mov_b32 v%d, 0x%x' % (t0, OOB))
    A('v_cndmask_b32 v%d, v%d, v%d, vcc' % (V_FS, t0, V_FS))
    A('s_mov_b32 s%d, %d' % (S_XF, L.XF))
    for lam in (2, 3):
        A('v_add_u32 v%d, s%d, v%d' % (AD[lam], S_PH + lam, V_L16))
    wait_mode(A, 'A_mode', Z)
    for k in range(4):
        A('ds_write_b128 v%d, %s offset:%d' % (V_LW, v(M + 4 * k, 4), k * 1024))
    A('s_waitcnt lgkmcnt(0)')
    A('s_barrier')

    def smf(acc, areg, breg):
        return '%s %s, %s, %s, v5' % (SMF, v(acc, 4), v(areg, 4), r(breg, 8))

    def wmf(t, lam):
        return smf(T + 4 * t, M + 4 * lam, regmap.get((t, lam), SX))

    def smx(ks, tt):
        return '%s %s, %s, %s, %s' % (MF16, v(SX + 4 * tt, 4), v(XA[ks] + 4 * tt, 4), v(GT + 4 * ks, 4),
                                      v(SX + 4 * tt, 4) if ks else '0')

    def epi(t):
        c = CV + 2 * (t & 1)
        return ['v_cvt_pk_bf16_f32 v%d, v%d, v%d' % (c, T + 4 * t, T + 4 * t + 1),
                'v_cvt_pk_bf16_f32 v%d, v%d, v%d' % (c + 1, T + 4 * t + 2, T + 4 * t + 3),
                'ds_write_b64 v%d, %s offset:%d' % (V_TW, v(c, 2), t * 640)]

    def trr(ks):
        return ['ds_read_b64_tr_b16 %s, v%d offset:%d' % (v(GT + 4 * ks + 2 * u, 2), V_TR, (32 * ks + 4 * u) * 40)
                for u in range(2)]

    def wst(k):
        return ['ds_read_b128 %s, v%d offset:%d' % (v(SX + 4 * q, 4), V_LW, k * 2048 + q * 1024) for q in range(2)]

    def fstore(pos):
        if A_FLAG == pos:
            slow.store(A, 'buffer_store_dword v%d, v%d, %s, 0 offen' % (V_FV, V_FS, SRD), 'A_fs')

    A.label('A_step')
    A('s_add_u32 s%d, s%d, 4096' % (S_T2, S_XF))
    for ks in range(4):
        for tt in range(2):
            A('buffer_load_dwordx4 %s, v%d, %s, s%d offen offset:%d' % (
                v(XA[ks] + 4 * tt, 4), V_XG3 if ks == 3 else V_XG, SRD, S_XF if ks < 2 else S_T2, (ks & 1) * 2048 + tt * 256))
    A('s_add_u32 s%d, s%d, %d' % (S_XF, S_XF, L.TILE))
    for x in wst(0):
        A(x)
    for lam in (4, 5, 6):
        A('v_add_u32 v%d, s%d, v%d' % (AD[lam], S_PH + lam, V_L16))
    zero = ['v_mov_b32 v%d, 0' % (T + i) for i in range(28)] + ['v_mov_b32 v%d, 0' % (SM + i) for i in range(4)]
    A('s_add_u32 s%d, s%d, 1' % (S_EXP, S_STEP))
    A('v_mov_b32 v%d, s%d' % (V_FV, S_EXP))
    if dbg:
        A('s_mov_b32 s%d, 0' % (48 + 2 * 5))
    flag_poll(A, 'A_fl', V_FL, CV, S_STEP, 3, [zero[:16], zero[16:]])
    if dbg:
        stamp(A, 4)
    A.label('A_poll')
    for x in mem_issue(M):
        A(x)
    if dbg:
        A('s_add_u32 s%d, s%d, 1' % (48 + 2 * 5, 48 + 2 * 5))
    ck = check(range(M, M + 8), TC)
    mf = [wmf(t, lam) for lam in range(3) for t in range(7)]
    mf += [wmf(t, lam) for t in range(7) for lam in range(3, 7)]
    mf += [smx(0, 0), smx(0, 1), smx(1, 0), smx(1, 1), smf(SM, M, GT), smx(2, 0), smx(2, 1)]
    A('s_waitcnt vmcnt(1)')
    A('ds_write_b128 v%d, %s offset:%d' % (V_P0, v(M, 4), LDS_M))
    A(ck[0])
    A('s_waitcnt vmcnt(0)')
    if dbg:
        stamp(A, 0)
    A('ds_write_b128 v%d, %s offset:%d' % (V_P1, v(M + 4, 4), LDS_M))
    fill = ck[1:] + ['s_cbranch_vccnz A_retry', ('by', 3)]
    fill += [('at', A_BAR), 's_waitcnt lgkmcnt(0)'] + ([stf(1)] if dbg else []) + ['s_barrier'] + ([stf(2)] if dbg else [])
    for lam in range(2, 7):
        fill += ['ds_read_b128 %s, v%d offset:%d' % (v(M + 4 * lam, 4), AD[lam], LDS_M)]
    fill += [('at', 13), 's_waitcnt lgkmcnt(4)', ('by', 14)] + ([stf(3)] if dbg else [])
    fill += [('at', 14)] + wst(1)
    fill += ['ds_read_b128 %s, v%d offset:%d' % (v(M, 4), V_MC, LDS_M),
             'ds_read_b128 %s, v%d offset:%d' % (v(M + 4, 4), V_MC2, LDS_M)]
    fill += [('at', 20), 's_waitcnt lgkmcnt(0)', ('by', 21)]
    for t in range(6):
        fill += [('at', min(21 + 4 * t + 5, 45))] + epi(t) + (trr(t >> 1) if t & 1 else [])
    fill += ['s_waitcnt lgkmcnt(4)', ('by', 49), ('at', 50)] + epi(6) + trr(3)
    fill += ['s_waitcnt lgkmcnt(3)', ('by', 54)]
    sched(A, mf, fill)
    if dbg:
        stamp(A, 6)
    A('s_waitcnt lgkmcnt(0)')
    if dbg:
        stamp(A, 7)
    A(smf(SM, M + 4, GT + 8))
    A(smx(3, 0))
    A(smx(3, 1))
    y0, y1 = CV, CV + 1
    A('s_cmp_lg_u32 s%d, 0' % S_MODE)
    A('v_add_f32_dpp v%d, v%d, v%d row_ror:8 row_mask:0xf bank_mask:0x3' % (y0, SM, SM))
    A('v_add_f32_dpp v%d, v%d, v%d row_ror:8 row_mask:0xf bank_mask:0x3' % (y1, SM + 1, SM + 1))
    A('v_add_f32_dpp v%d, v%d, v%d row_ror:8 row_mask:0xf bank_mask:0xc' % (y0, SM + 2, SM + 2))
    A('v_add_f32_dpp v%d, v%d, v%d row_ror:8 row_mask:0xf bank_mask:0xc' % (y1, SM + 3, SM + 3))
    for rr in range(2):
        A('v_add_f32_dpp v%d, v%d, v%d row_ror:8 row_mask:0xf bank_mask:0x3' % (SX + rr, SX + rr, SX + rr))
    A('v_permlane32_swap_b32 v%d, v%d' % (y0, y1))
    for rr in range(2, 4):
        A('v_add_f32_dpp v%d, v%d, v%d row_ror:8 row_mask:0xf bank_mask:0x3' % (SX + rr, SX + rr, SX + rr))
    A('v_add_f32 v%d, v%d, v%d' % (y0, y0, y1))
    for rr in range(4):
        A('v_add_f32_dpp v%d, v%d, v%d row_ror:8 row_mask:0xf bank_mask:0xc' % (SX + rr, SX + 4 + rr, SX + 4 + rr))
        if rr == 0:
            A('ds_write_b32 v%d, v%d' % (V_SW2, y0))
    A('ds_write_b128 v%d, %s' % (V_SW, v(SX, 4)))
    if dbg:
        stamp(A, 8)
    A('s_waitcnt lgkmcnt(0)')
    A('s_barrier')
    if dbg:
        stamp(A, 9)
    z = Z
    A('ds_read2st64_b64 %s, v%d offset0:0 offset1:5' % (v(z, 4), V_SR))
    A('ds_read2st64_b64 %s, v%d offset0:10 offset1:15' % (v(z + 4, 4), V_SR))
    fstore(0)
    A('s_waitcnt lgkmcnt(1)')
    A('v_pk_add_f32 %s, %s, %s' % (v(z, 2), v(z, 2), v(z + 2, 2)))
    A('s_waitcnt lgkmcnt(0)')
    A('v_pk_add_f32 %s, %s, %s' % (v(z + 4, 2), v(z + 4, 2), v(z + 6, 2)))
    A('v_pk_add_f32 %s, %s, %s' % (v(z, 2), v(z, 2), v(z + 4, 2)))
    mm, tt_ = z + 2, z + 3
    if dbg:
        stamp(A, 10)
    DP = ['quad_perm:[1,0,3,2]', 'quad_perm:[2,3,0,1]', 'row_half_mirror', 'row_mirror']
    A('v_max_f32 v%d, v%d, v%d' % (mm, z, z + 1))
    fstore(1)
    for d in DP:
        A('v_max_f32_dpp v%d, v%d, v%d %s row_mask:0xf bank_mask:0xf' % (mm, mm, mm, d))
    A('v_mov_b32 v%d, v%d' % (tt_, mm))
    fstore(2)
    A('v_permlane16_swap_b32 v%d, v%d' % (mm, tt_))
    A('v_max_f32 v%d, v%d, v%d' % (mm, mm, tt_))
    A('v_pk_add_f32 %s, %s, %s op_sel_hi:[1,0] neg_lo:[0,1] neg_hi:[0,1]' % (v(z, 2), v(z, 2), v(mm, 2)))
    A('v_exp_f32 v%d, v%d' % (z, z))
    A('v_exp_f32 v%d, v%d' % (z + 1, z + 1))
    A('v_add_f32 v%d, v%d, v%d' % (mm, z, z + 1))
    fstore(3)
    for d in DP:
        A('v_add_f32_dpp v%d, v%d, v%d %s row_mask:0xf bank_mask:0xf' % (mm, mm, mm, d))
    A('v_mov_b32 v%d, v%d' % (tt_, mm))
    A('v_permlane16_swap_b32 v%d, v%d' % (mm, tt_))
    A('v_add_f32 v%d, v%d, v%d' % (mm, mm, tt_))
    A('v_rcp_f32 v%d, v%d' % (mm, mm))
    A('v_pk_mul_f32 %s, %s, %s op_sel_hi:[1,0]' % (v(z, 2), v(z, 2), v(mm, 2)))
    A('v_cvt_pk_bf16_f32 v%d, v%d, v%d' % (z, z, z + 1))
    A('v_min_u32 v%d, -2, v%d' % (z, z))
    slow.store(A, 'buffer_store_dword v%d, v%d, %s, s%d offen' % (z, V_PS, SRD, S_LI), 'A_ps')
    if dbg:
        stamp(A, 11)
        stamp_flush(A, 0)
    A('s_add_u32 s%d, s%d, 1' % (S_STEP, S_STEP))
    A('s_add_u32 s%d, s%d, 7168' % (S_MI, S_MI))
    A('s_add_u32 s%d, s%d, %d' % (S_LI, S_LI, L.LIS))
    A('s_cmp_lt_u32 s%d, 63' % S_STEP)
    A('s_cbranch_scc1 A_step')
    A('s_waitcnt vmcnt(0)')
    A('s_endpgm')
    A.label('A_retry')
    A('s_sub_u32 s%d, s%d, 1' % (S_SPIN, S_SPIN))
    A('s_cbranch_scc1 abort')
    A('s_nop 7')
    for i in range(12):
        A('v_mov_b32 v%d, 0' % (T + i))
    A('s_branch A_poll')
    slow.emit(A)


def role_B(A, dbg=False, use_rdy=True):
    M = 16
    Y = 44
    YB = 76
    U = 92
    ST = 144
    P = 16
    F = 28
    Z = 136
    FR = 44
    V_PX, V_PM, V_RW, V_RR, V_LW = 9, 10, 11, 12, 13
    V_MS, V_MWR, V_MWS, TC = 124, 125, 126, 127
    AD = 128
    MWT = 136
    V_FL, V_FS, V_FV = 140, 141, 142
    LDS_M = 0
    LDS_R = 8192
    LDS_W = 12288

    regmap = {}
    k = 0
    for t in range(8):
        for lam in range(7):
            if t >= 6 and lam >= 1:
                continue
            regmap[(t, lam)] = 256 + 8 * k if k < 32 else 160 + 8 * (k - 32)
            k += 1
    assert k == 44
    slow = Slow()
    A.label('roleB')
    common_init(A)
    A('s_mul_i32 s%d, s%d, 24576' % (S_T2, S_W))
    A('s_add_u32 s%d, s%d, %d' % (S_T2, S_T2, LDS_W))
    A('v_add_u32 v%d, s%d, v%d' % (V_LW, S_T2, V_L16))
    n = 0
    for t in range(8):
        hh, u = t >> 1, t & 1
        A('s_lshl_b32 s%d, s%d, 2' % (S_T2, S_W))
        A('s_add_u32 s%d, s%d, %d' % (S_T2, S_T2, hh + 16))
        A('s_mul_i32 s%d, s%d, 14' % (S_T2, S_T2))
        A('s_add_u32 s%d, s%d, s%d' % (S_T2, S_T2, S_ROLE))
        A('s_mul_i32 s%d, s%d, %d' % (S_T2, S_T2, L.TILE))
        A('s_add_u32 s%d, s%d, %d' % (S_T2, S_T2, L.WF + u * 256))
        for lam in range(7):
            A('s_lshl_b32 s%d, s%d, 2' % (S_T3, S_PH + lam))
            A('s_add_u32 s%d, s%d, s%d' % (S_T3, S_T2, S_T3))
            if (t, lam) in regmap:
                w = regmap[(t, lam)]
            else:
                w = 16 + 8 * ((t - 6) * 6 + lam - 1)
            for q in range(2):
                A('buffer_load_dwordx4 %s, v4, %s, s%d offen offset:%d' % (r(w + 4 * q, 4), SRD, S_T3, q * 2048))
                n += 1
                if n % 16 == 0:
                    A('s_waitcnt vmcnt(32)')
    wait_mode(A, 'B_mode', 128)
    for t in (6, 7):
        for lam in range(1, 7):
            w = 16 + 8 * ((t - 6) * 6 + lam - 1)
            slot = (lam - 1) * 2 + (t - 6)
            for q in range(2):
                A('ds_write_b128 v%d, %s offset:%d' % (V_LW, v(w + 4 * q, 4), slot * 2048 + q * 1024))
    A('s_waitcnt lgkmcnt(0)')
    t0, t1 = TC, AD
    for lam in range(2, 7):
        A('v_add_u32 v%d, s%d, v%d' % (AD + lam, S_PH + lam, V_L16))
    A('s_lshl_b32 s%d, s%d, 11' % (S_T2, S_W))
    A('v_add_u32 v%d, s%d, v%d' % (V_PX, S_T2, V_L16))
    A('v_and_b32 v%d, 7, v1' % t0)
    A('v_lshlrev_b32 v%d, 4, v%d' % (V_PM, t0))
    A('v_bfe_u32 v%d, v1, 3, 1' % t0)
    A('v_lshl_add_u32 v%d, v%d, 7, v%d' % (V_PM, t0, V_PM))
    A('v_bfe_u32 v%d, v1, 5, 1' % t0)
    A('v_lshl_add_u32 v%d, v%d, 8, v%d' % (V_PM, t0, V_PM))
    A('s_lshl_b32 s%d, s%d, 9' % (S_T2, S_W))
    A('s_add_u32 s%d, s%d, 8192' % (S_T2, S_T2))
    A('v_add_u32 v%d, s%d, v%d' % (V_PM, S_T2, V_PM))
    A('v_bfe_u32 v%d, v1, 4, 1' % t0)
    A('v_lshlrev_b32 v%d, 5, v%d' % (t0, t0))
    A('v_xor_b32 v%d, v%d, v%d' % (V_RW, t0, V_L16))
    A('s_lshl_b32 s%d, s%d, 10' % (S_T2, S_W))
    A('s_add_u32 s%d, s%d, %d' % (S_T2, S_T2, LDS_R))
    A('v_add_u32 v%d, s%d, v%d' % (V_RW, S_T2, V_RW))
    A('v_and_b32 v%d, 1, v1' % V_RR)
    A('v_bfe_u32 v%d, v1, 1, 1' % t0)
    A('v_lshl_add_u32 v%d, v%d, 3, v%d' % (V_RR, t0, V_RR))
    A('v_bfe_u32 v%d, v1, 2, 1' % t0)
    A('v_lshl_add_u32 v%d, v%d, 2, v%d' % (V_RR, t0, V_RR))
    A('v_bfe_u32 v%d, v1, 5, 1' % t0)
    A('v_lshl_add_u32 v%d, v%d, 4, v%d' % (V_RR, t0, V_RR))
    A('s_and_b32 s%d, s%d, 1' % (S_T2, S_W))
    A('v_xor_b32 v%d, s%d, v%d' % (t0, S_T2, t0))
    A('v_lshl_add_u32 v%d, v%d, 1, v%d' % (V_RR, t0, V_RR))
    A('v_lshlrev_b32 v%d, 4, v%d' % (V_RR, V_RR))
    A('v_bfe_u32 v%d, v1, 3, 2' % t0)
    A('v_lshl_add_u32 v%d, v%d, 2, v%d' % (V_RR, t0, V_RR))
    A('s_lshr_b32 s%d, s%d, 1' % (S_T2, S_W))
    A('s_lshl_b32 s%d, s%d, 9' % (S_T2, S_T2))
    A('s_add_u32 s%d, s%d, %d' % (S_T2, S_T2, LDS_R))
    A('v_add_u32 v%d, s%d, v%d' % (V_RR, S_T2, V_RR))
    A('v_lshlrev_b32 v%d, 1, v1' % V_MS)
    A('s_lshl_b32 s%d, s%d, 9' % (S_T2, S_ROLE))
    A('s_lshl_b32 s%d, s%d, 7' % (S_T3, S_W))
    A('s_add_u32 s%d, s%d, s%d' % (S_T2, S_T2, S_T3))
    A('s_add_u32 s%d, s%d, 7168' % (S_T2, S_T2))
    A('v_add_u32 v%d, s%d, v%d' % (V_MS, S_T2, V_MS))
    A('v_and_b32 v%d, 1, v1' % t0)
    A('v_cmp_eq_u32 vcc, 0, v%d' % t0)
    A('v_mov_b32 v%d, 0x%x' % (t1, OOB))
    A('v_cndmask_b32 v%d, v%d, v%d, vcc' % (V_MS, t1, V_MS))
    A('v_lshlrev_b32 v%d, 3, v2' % V_MWR)
    A('v_bfe_u32 v%d, v1, 4, 1' % t0)
    A('v_lshl_add_u32 v%d, v%d, 8, v%d' % (V_MWR, t0, V_MWR))
    A('s_lshl_b32 s%d, s%d, 9' % (S_T2, S_ROLE))
    A('v_add_u32 v%d, s%d, v%d' % (V_MWR, S_T2, V_MWR))
    A('v_lshlrev_b32 v%d, 10, v%d' % (V_MWS, t0))
    A('v_and_b32 v%d, 1, v1' % t0)
    A('v_lshl_add_u32 v%d, v%d, 9, v%d' % (V_MWS, t0, V_MWS))
    A('v_bfe_u32 v%d, v1, 1, 3' % t0)
    A('v_lshl_add_u32 v%d, v%d, 4, v%d' % (V_MWS, t0, V_MWS))
    A('s_lshl_b32 s%d, s%d, 11' % (S_T2, S_ROLE))
    A('v_add_u32 v%d, s%d, v%d' % (V_MWS, S_T2, V_MWS))
    A('v_cmp_gt_u32 vcc, 32, v1')
    A('v_cndmask_b32 v%d, v%d, v%d, vcc' % (V_MWS, t1, V_MWS))
    A('s_mov_b32 s%d, %d' % (S_MW, L.MX))
    A('v_and_b32 v%d, 3, v1' % t0)
    A('v_lshlrev_b32 v%d, 2, v%d' % (V_FL, t0))
    A('s_lshl_b32 s%d, s%d, 7' % (S_T2, S_ROLE))
    A('s_lshl_b32 s%d, s%d, 4' % (S_T3, S_W))
    A('s_add_u32 s%d, s%d, s%d' % (S_T2, S_T2, S_T3))
    A('s_add_u32 s%d, s%d, %d' % (S_T2, S_T2, L.ctl(L.C_FP)))
    A('v_add_u32 v%d, s%d, v%d' % (V_FL, S_T2, V_FL))
    A('s_lshl_b32 s%d, s%d, 4' % (S_T2, S_ROLE))
    A('s_lshl_b32 s%d, s%d, 2' % (S_T3, S_W))
    A('s_add_u32 s%d, s%d, s%d' % (S_T2, S_T2, S_T3))
    A('s_add_u32 s%d, s%d, %d' % (S_T2, S_T2, L.ctl(L.C_FM)))
    A('v_lshlrev_b32 v%d, 8, v1' % V_FS)
    A('v_add_u32 v%d, s%d, v%d' % (V_FS, S_T2, V_FS))
    A('v_cmp_gt_u32 vcc, 17, v1')
    A('v_cndmask_b32 v%d, v%d, v%d, vcc' % (V_FS, t1, V_FS))
    A('s_mul_i32 s%d, s%d, 56' % (S_PF, S_W))
    A('s_add_u32 s%d, s%d, s%d' % (S_PF, S_PF, S_ROLE))
    A('s_lshl_b32 s%d, s%d, 11' % (S_PF, S_PF))
    A('s_add_u32 s%d, s%d, %d' % (S_PF, S_PF, L.UF))

    def mwpub(A, tag='B_nomw'):
        A('s_cmp_lg_u32 s%d, 3' % S_W)
        A('s_cbranch_scc1 %s' % tag)
        A('ds_read2_b32 %s, v%d offset0:0 offset1:32' % (v(MWT, 2), V_MWR))
        A('ds_read2_b32 %s, v%d offset0:1 offset1:33' % (v(MWT + 2, 2), V_MWR))
        A('s_waitcnt lgkmcnt(0)')
        A('buffer_store_dwordx4 %s, v%d, %s, s%d offen sc1' % (v(MWT, 4), V_MWS, SRD, S_MW))
        A('s_and_b32 s%d, s%d, 3' % (S_T0, S_STEP))
        A('s_cmp_eq_u32 s%d, 3' % S_T0)
        A('s_cselect_b32 s%d, %d, 0' % (S_T0, L.TILE - 512))
        A('s_add_u32 s%d, s%d, s%d' % (S_MW, S_MW, S_T0))
        A('s_add_u32 s%d, s%d, 128' % (S_MW, S_MW))
        A.label(tag)

    def stg(lam):
        return ['ds_read_b128 %s, v%d offset:%d' % (v(ST + 8 * tt + 4 * q, 4), V_LW, ((lam - 1) * 2 + tt) * 2048 + q * 1024)
                for tt in range(2) for q in range(2)]

    def fstore(pos):
        if B_FLAG == pos:
            slow.store(A, 'buffer_store_dword v%d, v%d, %s, 0 offen' % (V_FV, V_FS, SRD), 'B_fs')

    mw = ['ds_write_b128 v%d, %s offset:%d' % (V_P0, v(M, 4), LDS_M),
          'ds_write_b128 v%d, %s offset:%d' % (V_P1, v(M + 4, 4), LDS_M)]
    A.label('B_step')
    if use_rdy:
        A.label('B_rdy')
        A('s_cmp_lt_u32 s%d, s%d' % (S_STEP, S_RDY))
        A('s_cbranch_scc1 B_rdyok')
        refresh_ready(A, MWT)
        A('s_sub_u32 s%d, s%d, 1' % (S_SPIN, S_SPIN))
        A('s_cbranch_scc1 abort')
        A('s_branch B_rdy')
        A.label('B_rdyok')
    for i in range(32):
        A('v_mov_b32 v%d, 0' % (Y + i))
    for x in stg(1):
        A(x)
    if B_DELAY:
        A('s_sleep %d' % B_DELAY)
    if dbg:
        stamp(A, 10)
    poll_mem(A, 'B_poll', M, TC)
    if dbg:
        stamp(A, 0)
    ul = []
    for hh in range(4):
        for u in range(2):
            ul.append(['s_add_u32 s%d, s%d, %d' % (S_T1, S_PF, hh * 14 * 2048),
                       'buffer_load_dwordx4 %s, v4, %s, s%d offen offset:%d sc1' % (v(U + 16 * u + 4 * hh, 4), SRD, S_T1, u * 256)])
    if 'nou' in X:
        ul = [[]] * 8
    mf = []
    for lam in range(7):
        for t in range(8):
            b = regmap.get((t, lam), ST + 8 * (t - 6))
            mf.append('%s %s, %s, %s, v5' % (SMF, v(Y + 4 * t, 4), v(M + 4 * lam, 4), r(b, 8)))
    fill = mw + ul[0] + ul[1]
    fill += [('at', 3), 's_waitcnt lgkmcnt(0)'] + ([stf(1)] if dbg else []) + ['s_barrier'] + ([stf(2)] if dbg else [])
    for lam in range(2, 7):
        fill += ['ds_read_b128 %s, v%d offset:%d' % (v(M + 4 * lam, 4), AD + lam, LDS_M)]
    fill += ul[2] + [mwpub, ('at', 10)] + ul[3] + [('at', 12)] + ul[4]
    fill += [('at', 15), 's_waitcnt lgkmcnt(0)', ('by', 16)] + ([stf(3)] if dbg else [])
    for lam in range(2, 7):
        fill += [('at', 8 * lam - 1)] + stg(lam)
        if lam == 2:
            fill += ul[5] + ul[6] + ul[7]
        fill += [('at', 8 * lam + 5), 's_waitcnt lgkmcnt(0)', ('by', 8 * lam + 6)]
    sched(A, mf, fill)
    if dbg:
        stamp(A, 4)
    for hh in range(4):
        for u in range(2):
            t = 2 * hh + u
            base = YB + 8 * u + 4 * (hh >> 1) + (hh & 1)
            A('v_cvt_pk_bf16_f32 v%d, v%d, v%d' % (base, Y + 4 * t, Y + 4 * t + 1))
            A('v_cvt_pk_bf16_f32 v%d, v%d, v%d' % (base + 2, Y + 4 * t + 2, Y + 4 * t + 3))
    if dbg:
        stamp(A, 5)
        A('s_mov_b32 s%d, 0' % (48 + 2 * 1))
    A('s_add_u32 s%d, s%d, 1' % (S_EXP, S_STEP))
    A('v_mov_b32 v%d, s%d' % (V_FV, S_EXP))
    for i in range(8):
        A('v_mov_b32 v%d, 0' % (F + i))
    flag_poll(A, 'B_fl', V_FL, FR, S_EXP, 3)
    if dbg:
        stamp(A, 11)
    A.label('B_pollP')
    A('buffer_load_dwordx4 %s, v%d, %s, s%d offen sc1' % (v(P, 4), V_PX, SRD, S_LI))
    A('buffer_load_dwordx4 %s, v%d, %s, s%d offen offset:1024 sc1' % (v(P + 4, 4), V_PX, SRD, S_LI))
    A('buffer_load_dwordx4 %s, v%d, %s, s%d offen sc1' % (v(P + 8, 4), V_PM, SRD, S_LI))
    if dbg:
        A('s_add_u32 s%d, s%d, 1' % (48 + 2 * 1, 48 + 2 * 1))
    A('s_cmp_lg_u32 s%d, 0' % S_MODE)
    ck = check(range(P, P + 12), TC)

    def fmf(q, u):
        b = U + 16 * u + 8 * q if q < 2 else YB + 8 * u
        return '%s %s, %s, %s, v5' % (SMF, v(F + 4 * u, 4), v(P + 4 * q, 4), v(b, 8))
    A('s_waitcnt vmcnt(2)')
    A(fmf(0, 0))
    A(ck[0])
    A(fmf(0, 1))
    A('s_waitcnt vmcnt(1)')
    A(fmf(1, 0))
    A(ck[1])
    A(ck[2])
    A(fmf(1, 1))
    A('s_waitcnt vmcnt(0)')
    if dbg:
        stamp(A, 6)
    A(fmf(2, 0))
    A(ck[3])
    A(ck[4])
    A(fmf(2, 1))
    A(ck[5])
    A(ck[6])
    A('s_cbranch_vccnz B_retry')
    fstore(2)
    for rr in range(4):
        A('v_permlane32_swap_b32 v%d, v%d' % (F + rr, F + 4 + rr))
    A('v_pk_add_f32 %s, %s, %s' % (v(F, 2), v(F, 2), v(F + 4, 2)))
    A('v_pk_add_f32 %s, %s, %s' % (v(F + 2, 2), v(F + 2, 2), v(F + 6, 2)))
    A('ds_write_b128 v%d, %s' % (V_RW, v(F, 4)))
    fstore(1)
    if dbg:
        stamp(A, 7)
    A('s_waitcnt lgkmcnt(0)')
    A('s_barrier')
    if dbg:
        stamp(A, 8)
    A('ds_read2st64_b32 %s, v%d offset0:0 offset1:4' % (v(Z, 2), V_RR))
    A('ds_read2st64_b32 %s, v%d offset0:8 offset1:12' % (v(Z + 2, 2), V_RR))
    fstore(0)
    A('s_waitcnt lgkmcnt(0)')
    A('v_pk_add_f32 %s, %s, %s' % (v(Z, 2), v(Z, 2), v(Z + 2, 2)))
    A('v_add_f32 v%d, v%d, v%d' % (Z, Z, Z + 1))
    A('v_mov_b32_dpp v%d, v%d quad_perm:[1,0,3,2] row_mask:0xf bank_mask:0xf' % (Z + 1, Z))
    A('v_cvt_pk_bf16_f32 v%d, v%d, v%d' % (Z, Z, Z + 1))
    A('v_min_u32 v%d, -2, v%d' % (Z, Z))
    slow.store(A, 'buffer_store_dword v%d, v%d, %s, s%d offen' % (Z, V_MS, SRD, S_MI), 'B_ms')
    if dbg:
        stamp(A, 9)
        stamp_flush(A, 16)
    A('s_add_u32 s%d, s%d, 1' % (S_STEP, S_STEP))
    A('s_add_u32 s%d, s%d, 7168' % (S_MI, S_MI))
    A('s_add_u32 s%d, s%d, %d' % (S_LI, S_LI, L.LIS))
    A('s_add_u32 s%d, s%d, %d' % (S_PF, S_PF, 16 * 14 * 2048))
    A('s_cmp_lt_u32 s%d, 63' % S_STEP)
    A('s_cbranch_scc1 B_step')
    poll_mem(A, 'B_poll63', M, TC)
    for x in mw:
        A(x)
    A('s_waitcnt lgkmcnt(0)')
    A('s_barrier')
    mwpub(A, 'B_nomw63')
    A('s_waitcnt vmcnt(0)')
    A('s_endpgm')
    A.label('B_retry')
    A('s_sub_u32 s%d, s%d, 1' % (S_SPIN, S_SPIN))
    A('s_cbranch_scc1 abort')
    A('s_nop 7')
    for i in range(8):
        A('v_mov_b32 v%d, 0' % (F + i))
    A('s_branch B_pollP')
    slow.emit(A)


def role_P(A, use_rdy=True, NU=3, AHEAD=3):
    A.label('roleP')
    A('v_and_b32 v1, 63, v0')
    A('v_lshrrev_b32 v2, 6, v0')
    A('v_readfirstlane_b32 s%d, v2' % S_W)
    A('s_mov_b32 s%d, %d' % (S_SPIN, SPIN))
    A('s_mov_b32 s%d, 0' % S_RDY)
    A('s_lshl_b32 s%d, s%d, 2' % (S_T0, S_ROLE))
    A('s_add_u32 s%d, s%d, s%d' % (S_T0, S_T0, S_W))
    A('s_mul_i32 s%d, s%d, 45' % (S_T2, S_T0))
    A('v_add_u32 v2, s%d, v1' % S_T2)
    A('v_lshlrev_b32 v3, 7, v2')
    A('v_mov_b32 v4, 0')
    A('v_mov_b32 v5, 0')
    for lo, base, stride in ((0, L.XF, L.TILE), (224, L.MI - 224 * 128, 7168), (280, L.LI - 280 * 128, L.LIS)):
        A('v_cmp_le_u32 vcc, %d, v2' % lo)
        A('v_add_u32 v6, 0x%x, v3' % base)
        A('v_cndmask_b32 v4, v4, v6, vcc')
        A('v_mov_b32 v6, %d' % stride)
        A('v_cndmask_b32 v5, v5, v6, vcc')
    A('v_cmp_le_u32 vcc, 45, v1')
    A('v_mov_b32 v6, 0x%x' % OOB)
    A('v_cndmask_b32 v4, v4, v6, vcc')
    A('s_lshr_b32 s%d, s%d, 1' % (S_T2, S_T0))
    A('s_lshl_b32 s%d, s%d, 2' % (S_T2, S_T2))
    A('s_add_u32 s%d, s%d, 3' % (S_T2, S_T2))
    A('s_and_b32 s%d, s%d, 1' % (S_T3, S_T0))
    A('s_sub_u32 s%d, s%d, s%d' % (S_T2, S_T2, S_T3))
    A('s_mul_i32 s%d, s%d, %d' % (S_PF, S_T2, L.TILE))
    A('s_add_u32 s%d, s%d, %d' % (S_PF, S_PF, L.UF))
    A('v_lshlrev_b32 v7, 7, v1')
    A('v_mov_b32 v8, %d' % (L.ctl(L.C_FM) + 16 * 256))
    A('s_mov_b32 s%d, 0' % S_STEP)
    A.label('P_step')
    A.label('P_wait')
    A('buffer_load_dword v9, v8, %s, 0 offen sc1' % SRD)
    A('s_sub_u32 s%d, s%d, 1' % (S_SPIN, S_SPIN))
    A('s_cbranch_scc1 P_end')
    A('s_waitcnt vmcnt(0)')
    A('v_readfirstlane_b32 s%d, v9' % S_T2)
    A('s_add_u32 s%d, s%d, %d' % (S_T3, S_T2, AHEAD))
    A('s_cmp_le_u32 s%d, s%d' % (S_STEP, S_T3))
    A('s_cbranch_scc1 P_go')
    A('s_sleep 4')
    A('s_branch P_wait')
    A.label('P_go')
    A('buffer_load_dword v10, v4, %s, 0 offen' % SRD)
    A('v_add_u32 v4, v5, v4')
    A('s_cmp_lt_u32 s%d, s%d' % (S_STEP, S_T2))
    A('s_cbranch_scc1 P_next')
    if use_rdy:
        A('s_cmp_lt_u32 s%d, s%d' % (S_STEP, S_RDY))
        A('s_cbranch_scc1 P_u')
        refresh_ready(A, 12)
        A('s_cmp_lt_u32 s%d, s%d' % (S_STEP, S_RDY))
        A('s_cbranch_scc0 P_next')
        A.label('P_u')
    for k in range(NU):
        A('s_add_u32 s%d, s%d, %d' % (S_T3, S_PF, k * 8192))
        A('buffer_load_dword v%d, v7, %s, s%d offen' % (14 + k, SRD, S_T3))
    A.label('P_next')
    A('s_add_u32 s%d, s%d, %d' % (S_PF, S_PF, 16 * L.TILE))
    A('s_add_u32 s%d, s%d, 1' % (S_STEP, S_STEP))
    A('s_cmp_lt_u32 s%d, 63' % S_STEP)
    A('s_cbranch_scc1 P_step')
    A.label('P_end')
    A('s_waitcnt vmcnt(0)')
    A('s_endpgm')
```

```python
from asm import *

OOB = 0x7f000000
MF32 = 'v_mfma_f32_32x32x16_bf16'


class VM:
    def __init__(self, A):
        self.A = A
        self.ops = []

    def __call__(self, text, tag=None):
        self.A(text)
        self.ops.append(tag)

    def n_after(self, tag):
        idx = max(i for i, t in enumerate(self.ops) if t == tag)
        return len(self.ops) - 1 - idx

    def wait(self, tag):
        n = self.n_after(tag)
        assert n <= 63, n
        self.A('s_waitcnt vmcnt(%d)' % n)


DP4 = ['quad_perm:[1,0,3,2]', 'quad_perm:[2,3,0,1]', 'row_half_mirror', 'row_mirror']


def red32(A, op, x, t):
    for d in DP4:
        A('%s_dpp v%d, v%d, v%d %s row_mask:0xf bank_mask:0xf' % (op, x, x, x, d))
    A('v_mov_b32 v%d, v%d' % (t, x))
    A('v_permlane16_swap_b32 v%d, v%d' % (x, t))
    A('%s v%d, v%d, v%d' % (op, x, x, t))


def pi_lane(A, dst, src, t):
    A('v_and_b32 v%d, 0x33, v%d' % (dst, src))
    A('v_bfe_u32 v%d, v%d, 2, 1' % (t, src))
    A('v_lshl_or_b32 v%d, v%d, 3, v%d' % (dst, t, dst))
    A('v_bfe_u32 v%d, v%d, 3, 1' % (t, src))
    A('v_lshl_or_b32 v%d, v%d, 2, v%d' % (dst, t, dst))


def tr_addr(A, dst, t):
    A('v_bfe_u32 v%d, v1, 5, 1' % t)
    A('v_lshlrev_b32 v%d, 9, v%d' % (dst, t))
    A('v_bfe_u32 v%d, v1, 2, 2' % t)
    A('v_lshl_or_b32 v%d, v%d, 6, v%d' % (dst, t, dst))
    A('v_bfe_u32 v%d, v1, 4, 1' % t)
    A('v_lshl_or_b32 v%d, v%d, 5, v%d' % (dst, t, dst))
    A('v_and_b32 v%d, 1, v1' % t)
    A('v_lshl_or_b32 v%d, v%d, 4, v%d' % (dst, t, dst))
    A('v_bfe_u32 v%d, v1, 1, 1' % t)
    A('v_lshl_or_b32 v%d, v%d, 3, v%d' % (dst, t, dst))
```

```python
import os
from asm import *
from util import *
import layout as L
import wrap

WS = 's[8:11]'
AUX = 's[4:7]'
S_ROLE, S_W, S_MODE, S_SPIN = 12, 13, 15, 25
sTASK, sT0, sT1, sT2, sT3 = 16, 17, 18, 19, 20
sWT0, sWT1, sX, sXS, sO0, sO1, sOS, sCNT, sCS, sN, sI, sRB, sWB, sDEP, sYS, sSEG, sSG = 26, 27, 28, 29, 30, 31, 32, 33, 34, 35, 36, 37, 38, 39, 40, 41, 42
V_L16, V_Z, V_SIG, V_ONE, V_RD, V_T = 2, 3, 4, 5, 6, 7
SLOT = 131072
MAIN_LDS = SLOT + 64
WSPIN = int(os.environ.get('WSPIN', 1 << 16))
N_T, N_H, N_F = 28, 56, 64
G_S, G_O = 16, 28
N_PRE = N_T + N_H + N_F
N_ALL = N_PRE + 16 * (G_S + G_O)
K_ROLE, K_QU, K_GQ = 0, 1, 2
for _t in range(704):
    assert (_t * 1490) >> 16 == _t // 44
for _t in range(112):
    assert (_t * 4682) >> 16 == _t // 14
for _t in range(56):
    assert (_t * 9363) >> 16 == _t // 7


def wait_cnt(A, tag, s_addr, target, sleep=4):
    A.label(tag)
    A('buffer_load_dword v%d, v%d, %s, s%d offen sc1' % (V_T, V_Z, WS, s_addr))
    A('s_waitcnt vmcnt(0)')
    A('v_readfirstlane_b32 s%d, v%d' % (sT3, V_T))
    A('s_cmp_ge_u32 s%d, %d' % (sT3, target))
    A('s_cbranch_scc1 %s_ok' % tag)
    A('s_sub_u32 s%d, s%d, 1' % (S_SPIN, S_SPIN))
    A('s_cbranch_scc1 abort')
    A('s_sleep %d' % sleep)
    A('s_branch %s' % tag)
    A.label(tag + '_ok')


def check(regs, t):
    out = []
    regs = list(regs)
    out.append('v_max3_u32 v%d, v%d, v%d, v%d' % (t, regs[0], regs[1], regs[2]))
    rest = regs[3:]
    while len(rest) >= 2:
        out.append('v_max3_u32 v%d, v%d, v%d, v%d' % (t, t, rest[0], rest[1]))
        rest = rest[2:]
    if rest:
        out.append('v_max_u32 v%d, v%d, v%d' % (t, t, rest[0]))
    out.append('v_cmp_eq_u32 vcc, -1, v%d' % t)
    return out


def pop(A, s_addr, inc, dst):
    A('v_mov_b32 v%d, %s' % (V_T, inc))
    A('s_mov_b64 exec, 1')
    A('buffer_atomic_add v%d, v%d, %s, s%d offen sc0 sc1' % (V_T, V_Z, WS, s_addr))
    A('s_mov_b64 exec, -1')
    A('s_waitcnt vmcnt(0)')
    A('v_readfirstlane_b32 s%d, v%d' % (dst, V_T))


def entry(A, force_foreign=False):
    wrap.srd(A, 8, 96, L.WS_SIZE)
    A('v_and_b32 v1, 63, v0')
    A('v_lshrrev_b32 v2, 6, v0')
    A('v_readfirstlane_b32 s%d, v2' % S_W)
    A('v_lshlrev_b32 v%d, 4, v1' % V_L16)
    A('v_mov_b32 v%d, 0' % V_Z)
    A('v_mov_b32 v%d, 1' % V_ONE)
    A('v_mov_b32 v%d, 0x%x' % (V_SIG, OOB))
    A('v_cmp_eq_u32 vcc, 0, v0')
    A('v_cndmask_b32 v%d, v%d, v%d, vcc' % (V_SIG, V_SIG, V_Z))
    A('s_mov_b32 s%d, %d' % (S_SPIN, WSPIN))
    A('s_waitcnt lgkmcnt(0)')
    A('s_cmp_lg_u32 s%d, 0' % S_W)
    A('s_cbranch_scc1 W_bcast')
    A('s_getreg_b32 s%d, hwreg(HW_REG_XCC_ID)' % sT0)
    A('s_and_b32 s%d, s%d, 7' % (sT0, sT0))
    if force_foreign:
        A('s_bfe_u32 s%d, s2, 0x30003' % sT0)
    A('s_lshl_b32 s%d, s%d, 7' % (sT1, sT0))
    A('s_add_u32 s%d, s%d, %d' % (sT1, sT1, L.ctl(L.C_ROLE)))
    if force_foreign:
        A('s_cmp_eq_u32 s%d, 0' % sT0)
        A('s_cselect_b32 s%d, 0x10001, 1' % sT3)
        pop(A, sT1, 's%d' % sT3, sT2)
    else:
        pop(A, sT1, '1', sT2)
    A('s_and_b32 s%d, s%d, 0xffff' % (sT2, sT2))
    A('s_cmp_ge_u32 s%d, 32' % sT2)
    A('s_cbranch_scc1 W_scan')
    A('s_lshl_b32 s%d, s%d, 5' % (sT0, sT0))
    A('s_add_u32 s%d, s%d, s%d' % (sTASK, sT0, sT2))
    A('s_branch W_pub')
    A.label('W_next')
    A('s_barrier')
    A('s_cmp_lg_u32 s%d, 0' % S_W)
    A('s_cbranch_scc1 W_bcast')
    A.label('W_scan')
    A('v_lshlrev_b32 v8, 7, v1')
    A('v_mov_b32 v9, 32')
    A('v_cmp_eq_u32 vcc, 0, v1')
    A('v_cndmask_b32 v9, v9, 30, vcc')
    A('s_mov_b32 s%d, %d' % (sT1, L.ctl(L.C_ROLE)))
    A('buffer_load_dword v%d, v8, %s, s%d offen sc1' % (V_T, WS, sT1))
    A('s_waitcnt vmcnt(0)')
    A('v_and_b32 v%d, 0xffff, v%d' % (V_T, V_T))
    A('v_cmp_gt_u32 vcc, v9, v%d' % V_T)
    A('s_and_b32 s%d, vcc_lo, 0xff' % sT0)
    A('s_cbranch_scc0 W_gq')
    A('s_ff1_i32_b32 s%d, s%d' % (sT0, sT0))
    A('s_lshl_b32 s%d, s%d, 7' % (sT1, sT0))
    A('s_add_u32 s%d, s%d, %d' % (sT1, sT1, L.ctl(L.C_ROLE)))
    A('s_cmp_eq_u32 s%d, 0' % sT0)
    A('s_cselect_b32 s%d, 0x10001, 1' % sT3)
    pop(A, sT1, 's%d' % sT3, sT2)
    A('s_and_b32 s%d, s%d, 0xffff' % (sT2, sT2))
    A('s_cmp_eq_u32 s%d, 0' % sT0)
    A('s_cselect_b32 s%d, 30, 32' % sT3)
    A('s_cmp_ge_u32 s%d, s%d' % (sT2, sT3))
    A('s_cbranch_scc1 W_scan')
    A('s_lshl_b32 s%d, s%d, 5' % (sT0, sT0))
    A('s_add_u32 s%d, s%d, s%d' % (sTASK, sT0, sT2))
    A('s_branch W_pub')
    A.label('W_gq')
    A('s_mov_b32 s%d, %d' % (sT1, L.ctl(L.C_GQ)))
    pop(A, sT1, '1', sT2)
    A('s_add_u32 s%d, s%d, 256' % (sTASK, sT2))
    A.label('W_pub')
    A('v_mov_b32 v%d, s%d' % (V_T, sTASK))
    A('v_mov_b32 v8, %d' % SLOT)
    A('ds_write_b32 v8, v%d' % V_T)
    A('s_waitcnt lgkmcnt(0)')
    A.label('W_bcast')
    A('s_barrier')
    A('v_mov_b32 v8, %d' % SLOT)
    A('ds_read_b32 v%d, v8' % V_T)
    A('s_waitcnt lgkmcnt(0)')
    A('v_readfirstlane_b32 s%d, v%d' % (sTASK, V_T))
    A('s_cmp_lt_u32 s%d, 32' % sTASK)
    A('s_cbranch_scc1 W_role')
    A('s_sub_u32 s%d, s%d, 32' % (sTASK, sTASK))
    A('s_cmp_lt_u32 s%d, 224' % sTASK)
    A('s_cbranch_scc1 T_QU')
    A('s_sub_u32 s%d, s%d, 224' % (sTASK, sTASK))
    A('s_cmp_lt_u32 s%d, %d' % (sTASK, N_T))
    A('s_cbranch_scc1 T_T')
    A('s_sub_u32 s%d, s%d, %d' % (sTASK, sTASK, N_T))
    A('s_cmp_lt_u32 s%d, %d' % (sTASK, N_H))
    A('s_cbranch_scc1 T_H')
    A('s_sub_u32 s%d, s%d, %d' % (sTASK, sTASK, N_H))
    A('s_cmp_lt_u32 s%d, %d' % (sTASK, N_F))
    A('s_cbranch_scc1 T_F')
    A('s_sub_u32 s%d, s%d, %d' % (sTASK, sTASK, N_F))
    A('s_cmp_ge_u32 s%d, %d' % (sTASK, N_ALL - N_PRE))
    A('s_cbranch_scc1 W_quit')
    A('s_mul_i32 s%d, s%d, 1490' % (sSG, sTASK))
    A('s_lshr_b32 s%d, s%d, 16' % (sSG, sSG))
    A('s_mul_i32 s%d, s%d, 44' % (sT0, sSG))
    A('s_sub_u32 s%d, s%d, s%d' % (sTASK, sTASK, sT0))
    A('s_cmp_lt_u32 s%d, %d' % (sTASK, G_S))
    A('s_cbranch_scc1 T_S')
    A('s_sub_u32 s%d, s%d, %d' % (sTASK, sTASK, G_S))
    A('s_branch T_O')
    A.label('W_quit')
    A('s_endpgm')
    A.label('W_role')
    A('s_mov_b32 s%d, s%d' % (S_ROLE, sTASK))
    A('s_cmp_lt_u32 s%d, 16' % S_ROLE)
    A('s_cbranch_scc1 roleA')
    A('s_sub_u32 s%d, s%d, 16' % (S_ROLE, S_ROLE))
    A('s_cmp_lt_u32 s%d, 14' % S_ROLE)
    A('s_cbranch_scc1 roleB')
    A('s_sub_u32 s%d, s%d, 14' % (S_ROLE, S_ROLE))
    A('s_branch roleP')
    A.label('abort')
    wrap.srd(A, 4, 88, 256)
    A('v_mov_b32 v2, 0xdead')
    A('v_mov_b32 v3, s%d' % sTASK)
    A('v_mov_b32 v0, 0')
    A('s_waitcnt lgkmcnt(0)')
    A('s_mov_b64 exec, 1')
    A('buffer_store_dwordx2 v[2:3], v0, s[4:7], 0 offen')
    A('s_waitcnt vmcnt(0)')
    A('s_endpgm')


ACC, XW, EP, YM = 64, 96, 128, 144
LA = 6


def signal(A, s_addr):
    A('buffer_atomic_add v%d, v%d, %s, s%d offen sc1' % (V_ONE, V_SIG, WS, s_addr))


def dma_x(A):
    out = []
    for k in range(7):
        pre = []
        if k == 0:
            pre = ['s_mov_b32 m0, s%d' % sWB]
        if k == 4:
            pre = ['s_add_u32 m0, s%d, 4096' % sWB, 's_add_u32 s%d, s%d, 4096' % (sT0, sX)]
        out.append(pre + ['buffer_load_dwordx4 v%d, %s, s%d offen offset:%d sc1 lds' % (V_L16, WS, sX if k < 4 else sT0, (k & 3) * 1024)])
    out[-1] += ['s_add_u32 s%d, s%d, s%d' % (sX, sX, sXS),
                's_add_u32 s%d, s%d, %d' % (sWB, sWB, L.TILE),
                's_cmp_ge_u32 s%d, %d' % (sWB, 3 * L.TILE),
                's_cselect_b32 s%d, %d, 0' % (sT0, 3 * L.TILE),
                's_sub_u32 s%d, s%d, s%d' % (sWB, sWB, sT0)]
    return out


def rd(i):
    return 'ds_read_b128 %s, v%d offset:%d' % (v(XW + 4 * (i % 8), 4), V_RD, i * 1024)


def mf_phase(A, uform, fill):
    fill = list(fill)
    for i in range(28):
        A('s_waitcnt lgkmcnt(%d)' % (min(27, i + LA - 1) - i))
        for t in range(2):
            acc = v(ACC + 16 * t, 16)
            w, x = a(112 * t + 4 * i, 4), v(XW + 4 * (i % 8), 4)
            A('%s %s, %s, %s, %s' % (MF32, acc, x if uform else w, w if uform else x, acc if i else '0'))
            if t == 0 and i + LA < 28:
                A(rd(i + LA))
            if t == 1 and fill and i % 2 == 1:
                for x in fill.pop(0):
                    A(x)
    assert not fill


def epilogue(A, kind):
    if kind == 'F':
        for t in range(2):
            for rq in range(4):
                A('buffer_store_dwordx4 %s, v%d, %s, s%d offen offset:%d sc1' % (v(ACC + 16 * t + 4 * rq, 4), V_L16, WS, (sO0, sO1)[t], rq * 1024))
    elif kind == 'Y':
        for sq in range(4):
            for t in range(2):
                for k in range(2):
                    x = ACC + 16 * t + 4 * sq + 2 * k
                    A('v_cvt_pk_bf16_f32 v%d, v%d, v%d' % (EP + 4 * sq + 2 * t + k, x, x + 1))
            A('buffer_store_dwordx4 %s, v%d, %s, s%d offen sc1' % (v(EP + 4 * sq, 4), V_L16, WS, sO0))
            A('s_add_u32 s%d, s%d, %d' % (sO0, sO0, 112 * 1024))
        return
    else:
        for t in range(2):
            for hf in range(2):
                e = EP + 8 * t + 4 * hf
                for k in range(4):
                    x = ACC + 16 * t + 8 * hf + 2 * k
                    A('v_cvt_pk_bf16_f32 v%d, v%d, v%d' % (e + k, x, x + 1))
                    if kind == 'H':
                        A('v_pk_max_i16 v%d, v%d, 0' % (e + k, e + k))
                A('buffer_store_dwordx4 %s, v%d, %s, s%d offen offset:%d sc1' % (v(e, 4), V_L16, WS, (sO0, sO1)[t], hf * 1024))
    A('s_add_u32 s%d, s%d, s%d' % (sO0, sO0, sOS))
    A('s_add_u32 s%d, s%d, s%d' % (sO1, sO1, sOS))


def engine(A, kind):
    tag = 'E' + kind
    A.label(tag)
    n = 0
    for t in range(2):
        for kb in range(28):
            if kb % 4 == 0:
                A('s_add_u32 s%d, s%d, %d' % (sT0, (sWT0, sWT1)[t], kb * 1024))
            A('buffer_load_dwordx4 %s, v%d, %s, s%d offen offset:%d' % (a(112 * t + 4 * kb, 4), V_L16, WS, sT0, (kb & 3) * 1024))
    A('s_mul_i32 s%d, s%d, 7168' % (sWB, S_W))
    A('s_add_u32 s%d, s%d, s%d' % (sX, sX, sWB))
    A('s_mov_b32 s%d, 0' % sRB)
    A('s_mov_b32 s%d, 0' % sI)
    A('s_waitcnt vmcnt(40)')
    for k in range(2):
        if kind == 'F':
            wait_cnt(A, tag + '_d%d' % k, sDEP, 7)
            A('s_add_u32 s%d, s%d, s%d' % (sDEP, sDEP, sCS))
        for g in dma_x(A):
            for x in g:
                A(x)
    A.label(tag + '_top')
    A('v_add_u32 v%d, s%d, v%d' % (V_RD, sRB, V_L16))
    A('s_waitcnt vmcnt(7)')
    A('s_barrier')
    for i in range(LA):
        A(rd(i))
    A('s_add_u32 s%d, s%d, %d' % (sRB, sRB, L.TILE))
    A('s_cmp_ge_u32 s%d, %d' % (sRB, 3 * L.TILE))
    A('s_cselect_b32 s%d, 0, s%d' % (sRB, sRB))
    A('s_cmp_lt_u32 s%d, 2' % sI)
    A('s_cbranch_scc1 %s_nosig' % tag)
    signal(A, sCNT)
    A('s_add_u32 s%d, s%d, s%d' % (sCNT, sCNT, sCS))
    A.label(tag + '_nosig')
    A('s_cmp_lt_u32 s%d, 1' % sI)
    A('s_cbranch_scc1 %s_noepi' % tag)
    epilogue(A, kind)
    A.label(tag + '_noepi')
    A('s_add_u32 s%d, s%d, 1' % (sI, sI))
    if kind == 'F':
        A('s_add_u32 s%d, s%d, 1' % (sT0, sI))
        A('s_cmp_ge_u32 s%d, s%d' % (sT0, sN))
        A('s_cbranch_scc1 %s_d2_ok' % tag)
        wait_cnt(A, tag + '_d2', sDEP, 7)
        A('s_add_u32 s%d, s%d, s%d' % (sDEP, sDEP, sCS))
    mf_phase(A, kind == 'U', dma_x(A))
    A('s_cmp_lt_u32 s%d, s%d' % (sI, sN))
    A('s_cbranch_scc1 %s_top' % tag)
    epilogue(A, kind)
    A('s_waitcnt vmcnt(0)')
    A('s_barrier')
    signal(A, sCNT)
    A('s_add_u32 s%d, s%d, s%d' % (sCNT, sCNT, sCS))
    signal(A, sCNT)
    if kind != 'U':
        A('s_branch W_next')
        return
    A('s_cmp_eq_u32 s%d, 0' % sYS)
    A('s_cbranch_scc1 W_next')
    A('s_mov_b32 s%d, s%d' % (sO0, sYS))
    A('s_mul_i32 s%d, s%d, 7168' % (sWB, S_W))
    A('s_add_u32 s%d, s%d, %d' % (sX, sWB, L.MX))
    A('v_add_u32 v8, s%d, v%d' % (sWB, V_L16))
    A('v_mov_b32 v%d, v%d' % (V_RD, V_L16))
    A('s_mov_b32 s%d, %d' % (sCNT, L.ctl(L.C_Y)))
    A('s_mov_b32 s%d, 0' % sI)
    A.label('EY_top')
    A('s_add_u32 s%d, s%d, 4096' % (sT0, sX))
    for k in range(7):
        A('buffer_load_dwordx4 %s, v%d, %s, s%d offen offset:%d sc1' % (v(YM + 4 * k, 4), V_L16, WS, sX if k < 4 else sT0, (k & 3) * 1024))
    A('s_waitcnt vmcnt(0)')
    for x in check(range(YM, YM + 28), V_T):
        A(x)
    A('s_cbranch_vccz EY_ok')
    A('s_sub_u32 s%d, s%d, 1' % (S_SPIN, S_SPIN))
    A('s_cbranch_scc1 abort')
    A('s_sleep 6')
    A('s_branch EY_top')
    A.label('EY_ok')
    for k in range(7):
        A('ds_write_b128 v8, %s offset:%d' % (v(YM + 4 * k, 4), k * 1024))
    A('s_waitcnt lgkmcnt(0)')
    A('s_barrier')
    for i in range(LA):
        A(rd(i))
    mf_phase(A, True, [])
    epilogue(A, 'Y')
    A('s_waitcnt vmcnt(0)')
    A('s_barrier')
    signal(A, sCNT)
    A('s_add_u32 s%d, s%d, 128' % (sCNT, sCNT))
    A('s_add_u32 s%d, s%d, %d' % (sX, sX, L.TILE))
    A('s_add_u32 s%d, s%d, 1' % (sI, sI))
    A('s_cmp_lt_u32 s%d, 16' % sI)
    A('s_cbranch_scc1 EY_top')
    A('s_branch W_next')


def task_QU(A):
    A.label('T_QU')
    A('s_and_b32 s%d, s%d, 3' % (sSEG, sTASK))
    A('s_lshr_b32 s%d, s%d, 3' % (sT0, sTASK))
    A('s_lshl_b32 s%d, s%d, 2' % (sT0, sT0))
    A('s_add_u32 s%d, s%d, s%d' % (sT0, sT0, S_W))
    A('s_mul_i32 s%d, s%d, 4682' % (sT1, sT0))
    A('s_lshr_b32 s%d, s%d, 16' % (sT1, sT1))
    A('s_mul_i32 s%d, s%d, 14' % (sT1, sT1))
    A('s_add_u32 s%d, s%d, s%d' % (sT1, sT1, sT0))
    A('s_mul_i32 s%d, s%d, %d' % (sWT0, sT1, L.TILE))
    A('s_lshl_b32 s%d, s%d, 11' % (sO0, sT1))
    A('s_mul_i32 s%d, s%d, %d' % (sT1, sSEG, 16 * L.TILE))
    A('s_add_u32 s%d, s%d, s%d' % (sO0, sO0, sT1))
    A('s_mul_i32 s%d, s%d, %d' % (sX, sSEG, L.TILE))
    A('s_add_u32 s%d, s%d, %d' % (sX, sX, L.XF))
    A('s_mov_b32 s%d, %d' % (sXS, 4 * L.TILE))
    A('s_mov_b32 s%d, %d' % (sOS, 64 * L.TILE))
    A('s_lshl_b32 s%d, s%d, 7' % (sCNT, sSEG))
    A('s_mov_b32 s%d, 512' % sCS)
    A('s_mov_b32 s%d, 16' % sN)
    A('s_lshl_b32 s%d, s%d, 10' % (sYS, sT0))
    A('s_add_u32 s%d, s%d, %d' % (sYS, sYS, L.YF))
    A('s_cmp_eq_u32 s%d, 3' % sSEG)
    A('s_cselect_b32 s%d, s%d, 0' % (sYS, sYS))
    A('s_bitcmp1_b32 s%d, 2' % sTASK)
    A('s_cselect_b32 s%d, %d, 0' % (sT0, 224 * L.TILE))
    A('s_cselect_b32 s%d, %d, 0' % (sT1, L.UF - L.QF))
    A('s_cselect_b32 s%d, %d, %d' % (sT2, L.ctl(L.C_U), L.ctl(L.C_Q)))
    A('s_add_u32 s%d, s%d, s%d' % (sWT0, sWT0, sT0))
    A('s_add_u32 s%d, s%d, %d' % (sWT0, sWT0, L.WF))
    A('s_add_u32 s%d, s%d, %d' % (sWT1, sWT0, 14 * L.TILE))
    A('s_add_u32 s%d, s%d, s%d' % (sO0, sO0, sT1))
    A('s_add_u32 s%d, s%d, %d' % (sO0, sO0, L.QF))
    A('s_add_u32 s%d, s%d, %d' % (sO1, sO0, 14 * 2048))
    A('s_add_u32 s%d, s%d, s%d' % (sCNT, sCNT, sT2))
    A('s_bitcmp1_b32 s%d, 2' % sTASK)
    A('s_cbranch_scc1 EU')
    A('s_branch EQ')


def task_H(A):
    A.label('T_H')
    A('s_mul_i32 s%d, s%d, 9363' % (sSEG, sTASK))
    A('s_lshr_b32 s%d, s%d, 16' % (sSEG, sSEG))
    A('s_mul_i32 s%d, s%d, 7' % (sT0, sSEG))
    A('s_sub_u32 s%d, s%d, s%d' % (sT0, sTASK, sT0))
    A('s_lshl_b32 s%d, s%d, 2' % (sT0, sT0))
    A('s_add_u32 s%d, s%d, s%d' % (sT0, sT0, S_W))
    A('s_mul_i32 s%d, s%d, %d' % (sWT0, sT0, 2 * L.TILE))
    A('s_add_u32 s%d, s%d, %d' % (sWT0, sWT0, L.WF + 448 * L.TILE))
    A('s_add_u32 s%d, s%d, %d' % (sWT1, sWT0, L.TILE))
    A('s_lshl_b32 s%d, s%d, 12' % (sO0, sT0))
    A('s_mul_i32 s%d, s%d, %d' % (sT1, sSEG, 32 * L.TILE))
    A('s_add_u32 s%d, s%d, s%d' % (sO0, sO0, sT1))
    A('s_add_u32 s%d, s%d, %d' % (sO0, sO0, L.HF))
    A('s_add_u32 s%d, s%d, 2048' % (sO1, sO0))
    A('s_mov_b32 s%d, %d' % (sOS, 4 * L.TILE))
    A('s_mul_i32 s%d, s%d, %d' % (sX, sSEG, 8 * L.TILE))
    A('s_add_u32 s%d, s%d, %d' % (sX, sX, L.XF))
    A('s_mov_b32 s%d, %d' % (sXS, L.TILE))
    A('s_lshl_b32 s%d, s%d, 10' % (sCNT, sSEG))
    A('s_add_u32 s%d, s%d, %d' % (sCNT, sCNT, L.ctl(L.C_H)))
    A('s_mov_b32 s%d, 128' % sCS)
    A('s_mov_b32 s%d, 8' % sN)
    A('s_mov_b32 s%d, %d' % (sT0, L.ctl(L.C_T)))
    wait_cnt(A, 'T_H_w', sT0, N_T)
    A('s_branch EH')


def task_F(A):
    A.label('T_F')
    A('s_lshr_b32 s%d, s%d, 3' % (sSEG, sTASK))
    A('s_and_b32 s%d, s%d, 7' % (sT0, sTASK))
    A('s_mul_i32 s%d, s%d, 7' % (sT0, sT0))
    A('s_lshl_b32 s%d, s%d, 1' % (sT1, S_W))
    A('s_add_u32 s%d, s%d, s%d' % (sT0, sT0, sT1))
    A('s_mul_i32 s%d, s%d, %d' % (sWT0, sT0, L.TILE))
    A('s_add_u32 s%d, s%d, %d' % (sWT0, sWT0, L.W2F))
    A('s_add_u32 s%d, s%d, %d' % (sWT1, sWT0, L.TILE))
    A('s_lshl_b32 s%d, s%d, 12' % (sO0, sT0))
    A('s_mul_i32 s%d, s%d, %d' % (sT1, sSEG, 8 * 56 * 4096))
    A('s_add_u32 s%d, s%d, s%d' % (sO0, sO0, sT1))
    A('s_add_u32 s%d, s%d, %d' % (sO0, sO0, L.FF))
    A('s_add_u32 s%d, s%d, 4096' % (sO1, sO0))
    A('s_cmp_eq_u32 s%d, 3' % S_W)
    A('s_cselect_b32 s%d, 0x%x, s%d' % (sO1, OOB, sO1))
    A('s_cselect_b32 s%d, s%d, s%d' % (sWT1, sWT0, sWT1))
    A('s_mov_b32 s%d, %d' % (sOS, 56 * 4096))
    A('s_bfe_u32 s%d, s%d, 0x20001' % (sT0, sTASK))
    A('s_lshl_b32 s%d, s%d, 5' % (sT1, sSEG))
    A('s_add_u32 s%d, s%d, s%d' % (sT0, sT0, sT1))
    A('s_mul_i32 s%d, s%d, %d' % (sX, sT0, L.TILE))
    A('s_add_u32 s%d, s%d, %d' % (sX, sX, L.HF))
    A('s_mov_b32 s%d, %d' % (sXS, 4 * L.TILE))
    A('s_lshl_b32 s%d, s%d, 10' % (sCNT, sSEG))
    A('s_add_u32 s%d, s%d, %d' % (sDEP, sCNT, L.ctl(L.C_H)))
    A('s_add_u32 s%d, s%d, %d' % (sCNT, sCNT, L.ctl(L.C_F)))
    A('s_mov_b32 s%d, 128' % sCS)
    A('s_mov_b32 s%d, 8' % sN)
    A('s_mov_b32 s%d, %d' % (sT0, L.ctl(L.C_T)))
    wait_cnt(A, 'T_F_w', sT0, N_T)
    A('s_branch EF')


def task_T(A):
    A.label('T_T')
    A('s_lshl_b32 s%d, s%d, 2' % (sT0, sTASK))
    A('s_add_u32 s%d, s%d, s%d' % (sT0, sT0, S_W))
    A('s_mul_i32 s%d, s%d, %d' % (sO0, sT0, L.TILE))
    A('s_add_u32 s%d, s%d, %d' % (sO0, sO0, L.WF + 448 * L.TILE))
    assert L.W2F == L.WF + 504 * L.TILE
    A('v_lshrrev_b32 v8, 2, v1')
    A('v_and_b32 v9, 3, v1')
    A('s_cmp_ge_u32 s%d, 14' % sTASK)
    A('s_cbranch_scc1 T_T2')
    wrap.srd(A, 4, 64, 448 * 1792 * 2)
    A('s_lshl_b32 s%d, s%d, 6' % (sX, sT0))
    A('s_mov_b32 s%d, 3584' % sXS)
    A('s_branch T_T3')
    A.label('T_T2')
    wrap.srd(A, 4, 72, 448 * 1792 * 2)
    A('s_sub_u32 s%d, s%d, 56' % (sT0, sT0))
    A('s_mul_i32 s%d, s%d, 4682' % (sT1, sT0))
    A('s_lshr_b32 s%d, s%d, 16' % (sT1, sT1))
    A('s_mul_i32 s%d, s%d, 14' % (sT2, sT1))
    A('s_sub_u32 s%d, s%d, s%d' % (sT0, sT0, sT2))
    A('s_lshl_b32 s%d, s%d, 6' % (sX, sT0))
    A('s_mul_i32 s%d, s%d, %d' % (sT1, sT1, 448 * 896))
    A('s_add_u32 s%d, s%d, s%d' % (sX, sX, sT1))
    A('s_mov_b32 s%d, 896' % sXS)
    A.label('T_T3')
    A('v_mul_lo_u32 v8, v8, s%d' % sXS)
    A('v_lshl_add_u32 v8, v9, 4, v8')
    A('s_lshl_b32 s%d, s%d, 4' % (sXS, sXS))
    A('s_mul_i32 s%d, s%d, %d' % (sWB, S_W, L.TILE))
    A('s_waitcnt lgkmcnt(0)')
    for n in range(28):
        A('s_add_u32 m0, s%d, %d' % (sWB, n * 1024))
        A('buffer_load_dwordx4 v8, %s, s%d offen lds' % (AUX, sX))
        A('s_add_u32 s%d, s%d, s%d' % (sX, sX, sXS))
    tr_addr(A, 9, 10)
    A('v_add_u32 v9, s%d, v9' % sWB)
    for q in range(4):
        A('s_waitcnt vmcnt(%d)' % (21 - 7 * q + 7 * q))
        for k in range(7):
            for u in range(2):
                A('ds_read_b64_tr_b16 %s, v9 offset:%d' % (v(16 + 28 * q + 4 * k + 2 * u, 2), (7 * q + k) * 1024 + u * 256))
        A('s_add_u32 s%d, s%d, 4096' % (sT0, sO0))
        for k in range(7):
            A('s_waitcnt lgkmcnt(%d)' % (12 - 2 * k))
            A('buffer_store_dwordx4 %s, v%d, %s, s%d offen offset:%d sc1' % (v(16 + 28 * q + 4 * k, 4), V_L16, WS, sO0 if k < 4 else sT0, (k & 3) * 1024))
        A('s_add_u32 s%d, s%d, 7168' % (sO0, sO0))
    A('s_waitcnt vmcnt(0)')
    A('s_barrier')
    A('s_mov_b32 s%d, %d' % (sT0, L.ctl(L.C_T)))
    signal(A, sT0)
    A('s_branch W_next')


def task_S(A):
    MXR, SX, SM, TT = 16, 48, 64, 128
    A.label('T_S')
    A('s_lshr_b32 s%d, s%d, 2' % (sI, sTASK))
    A('s_lshl_b32 s%d, s%d, 2' % (sSEG, sSG))
    A('s_add_u32 s%d, s%d, s%d' % (sSEG, sSEG, sI))
    A('s_and_b32 s%d, s%d, 3' % (sT0, sTASK))
    A('s_lshl_b32 s%d, s%d, 2' % (sT0, sT0))
    A('s_add_u32 s%d, s%d, s%d' % (sT0, sT0, S_W))
    A('s_lshl_b32 s%d, s%d, 4' % (sN, sSEG))
    A('s_add_u32 s%d, s%d, s%d' % (sN, sN, sT0))
    A('s_mul_i32 s%d, s%d, %d' % (sX, sSEG, L.TILE))
    A('s_add_u32 s%d, s%d, %d' % (sX, sX, L.XF))
    for kb in range(28):
        if kb and kb % 4 == 0:
            A('s_add_u32 s%d, s%d, 4096' % (sX, sX))
        A('buffer_load_dwordx4 %s, v%d, %s, s%d offen offset:%d' % (a(112 + 4 * kb, 4), V_L16, WS, sX, (kb & 3) * 1024))
    A('s_lshl_b32 s%d, s%d, 7' % (sCNT, sSEG))
    A('s_add_u32 s%d, s%d, %d' % (sT0, sCNT, L.ctl(L.C_Q)))
    wait_cnt(A, 'T_S_q', sT0, 28)
    A('s_mul_i32 s%d, s%d, %d' % (sX, sN, L.TILE))
    A('s_add_u32 s%d, s%d, %d' % (sX, sX, L.QF))
    for kb in range(28):
        if kb and kb % 4 == 0:
            A('s_add_u32 s%d, s%d, 4096' % (sX, sX))
        A('buffer_load_dwordx4 %s, v%d, %s, s%d offen offset:%d sc1' % (a(4 * kb, 4), V_L16, WS, sX, (kb & 3) * 1024))
    A('v_bfe_u32 v9, v1, 3, 2')
    A('v_lshlrev_b32 v8, 10, v9')
    A('v_lshrrev_b32 v9, 5, v1')
    A('v_lshl_add_u32 v8, v9, 9, v8')
    A('v_and_b32 v10, 7, v1')
    A('v_lshl_add_u32 v8, v10, 4, v8')
    A('s_mul_i32 s%d, s%d, %d' % (sX, sSG, L.TILE))
    A('s_lshl_b32 s%d, s%d, 7' % (sT0, sI))
    A('s_add_u32 s%d, s%d, s%d' % (sX, sX, sT0))
    A('s_add_u32 s%d, s%d, %d' % (sX, sX, L.MX))
    A('v_and_b32 v10, 31, v1')
    A('v_lshlrev_b32 v9, 2, v9')
    A('v_sub_u32 v10, v10, v9')
    A('v_mov_b32 v11, 0xff800000')
    for kb in range(28):
        A('s_waitcnt vmcnt(%d)' % (27 - kb))
        A('%s %s, %s, %s, %s' % (MF32, v(SX, 16), a(112 + 4 * kb, 4), a(4 * kb, 4), v(SX, 16) if kb else '0'))
    for r_ in range(16):
        A('v_cmp_le_i32 vcc, %d, v10' % (8 * (r_ >> 2) + (r_ & 3)))
        A('v_cndmask_b32 v%d, v11, v%d, vcc' % (SX + r_, SX + r_))
    mx = TT
    A('v_max3_f32 v%d, v%d, v%d, v%d' % (mx, SX, SX + 1, SX + 2))
    for k in range(3, 15, 2):
        A('v_max3_f32 v%d, v%d, v%d, v%d' % (mx, mx, SX + k, SX + k + 1))
    A('v_max_f32 v%d, v%d, v%d' % (mx, mx, SX + 15))
    A.label('T_S_m')
    A('s_mov_b32 s%d, s%d' % (sT0, sX))
    for k in range(7):
        A('buffer_load_dwordx4 %s, v8, %s, s%d offen sc1' % (v(MXR + 4 * k, 4), WS, sT0))
        if k < 6:
            A('s_add_u32 s%d, s%d, 4096' % (sT0, sT0))
    A('s_waitcnt vmcnt(0)')
    for x in check(range(MXR, MXR + 28), V_T):
        A(x)
    A('s_cbranch_vccz T_S_mok')
    A('s_sub_u32 s%d, s%d, 1' % (S_SPIN, S_SPIN))
    A('s_cbranch_scc1 abort')
    A('s_sleep 6')
    A('s_branch T_S_m')
    A.label('T_S_mok')
    for k in range(7):
        for q in range(4):
            acc = v(SM + 16 * q, 16)
            A('%s %s, %s, %s, %s' % (MF32, acc, v(MXR + 4 * k, 4), a(4 * (4 * k + q), 4), acc if k else '0'))
    A('s_lshl_b32 s%d, s%d, 11' % (sO0, sN))
    A('s_add_u32 s%d, s%d, %d' % (sO0, sO0, L.PX))
    A('s_lshr_b32 s%d, s%d, 1' % (sO1, sN))
    A('s_lshl_b32 s%d, s%d, 10' % (sO1, sO1))
    A('s_and_b32 s%d, s%d, 1' % (sT0, sN))
    A('s_lshl_b32 s%d, s%d, 3' % (sT0, sT0))
    A('s_add_u32 s%d, s%d, s%d' % (sO1, sO1, sT0))
    A('s_add_u32 s%d, s%d, %d' % (sO1, sO1, L.PM))
    A('s_add_u32 s%d, s%d, %d' % (sCNT, sCNT, L.ctl(L.C_P)))
    for k in range(2):
        A('v_pk_add_f32 %s, %s, %s' % (v(SM + 2 * k, 2), v(SM + 2 * k, 2), v(SM + 20 + 2 * k, 2)))
    for k in range(2):
        A('v_pk_add_f32 %s, %s, %s' % (v(SM + 40 + 2 * k, 2), v(SM + 40 + 2 * k, 2), v(SM + 60 + 2 * k, 2)))
    for k in range(2):
        A('v_pk_add_f32 %s, %s, %s' % (v(SM + 2 * k, 2), v(SM + 2 * k, 2), v(SM + 40 + 2 * k, 2)))
    assert SM == SX + 16
    A('v_max3_f32 v%d, v%d, v%d, v%d' % (mx, mx, SM, SM + 1))
    A('v_max3_f32 v%d, v%d, v%d, v%d' % (mx, mx, SM + 2, SM + 3))
    A('v_mov_b32 v%d, v%d' % (mx + 1, mx))
    A('v_permlane32_swap_b32 v%d, v%d' % (mx, mx + 1))
    A('v_max_f32 v%d, v%d, v%d' % (mx, mx, mx + 1))
    for k in range(10):
        x = v(SX + 2 * k, 2)
        A('v_pk_add_f32 %s, %s, %s op_sel_hi:[1,0] neg_lo:[0,1] neg_hi:[0,1]' % (x, x, v(mx, 2)))
        A('v_exp_f32 v%d, v%d' % (SX + 2 * k, SX + 2 * k))
        A('v_exp_f32 v%d, v%d' % (SX + 2 * k + 1, SX + 2 * k + 1))
    sm = TT + 2
    A('v_pk_add_f32 %s, %s, %s' % (v(sm, 2), v(SX, 2), v(SX + 2, 2)))
    for k in range(2, 10):
        A('v_pk_add_f32 %s, %s, %s' % (v(sm, 2), v(sm, 2), v(SX + 2 * k, 2)))
    A('v_add_f32 v%d, v%d, v%d' % (sm, sm, sm + 1))
    A('v_mov_b32 v%d, v%d' % (sm + 1, sm))
    A('v_permlane32_swap_b32 v%d, v%d' % (sm, sm + 1))
    A('v_add_f32 v%d, v%d, v%d' % (sm, sm, sm + 1))
    A('v_rcp_f32 v%d, v%d' % (sm, sm))
    o = TT + 4
    for k in range(10):
        x = v(SX + 2 * k, 2)
        A('v_pk_mul_f32 %s, %s, %s op_sel_hi:[1,0]' % (x, x, v(sm, 2)))
        A('v_cvt_pk_bf16_f32 v%d, v%d, v%d' % (o + k, SX + 2 * k, SX + 2 * k + 1))
        if k in (3, 7):
            A('buffer_store_dwordx4 %s, v%d, %s, s%d offen offset:%d sc1' % (v(o + k - 3, 4), V_L16, WS, sO0, (k >> 2) * 1024))
    A('buffer_store_dwordx2 %s, v%d, %s, s%d offen sc1' % (v(o + 8, 2), V_L16, WS, sO1))
    A('s_waitcnt vmcnt(0)')
    A('s_mov_b64 exec, 1')
    A('buffer_atomic_add v%d, v%d, %s, s%d offen sc1' % (V_ONE, V_Z, WS, sCNT))
    A('s_mov_b64 exec, -1')
    A('s_branch W_next')


def task_O(A):
    FP, XV, PXR, PMR, YR, AC, RR = 16, 48, 64, 96, 104, 128, 160
    A.label('T_O')
    wrap.srd(A, 4, 0, 2048 * 448 * 2)
    A('s_mul_i32 s%d, s%d, 9363' % (sI, sTASK))
    A('s_lshr_b32 s%d, s%d, 16' % (sI, sI))
    A('s_mul_i32 s%d, s%d, 7' % (sT0, sI))
    A('s_sub_u32 s%d, s%d, s%d' % (sN, sTASK, sT0))
    A('s_lshl_b32 s%d, s%d, 2' % (sSEG, sSG))
    A('s_add_u32 s%d, s%d, s%d' % (sSEG, sSEG, sI))
    A('s_lshl_b32 s%d, s%d, 7' % (sCNT, sSEG))
    A('v_and_b32 v8, 31, v1')
    A('v_mul_u32_u24 v8, 896, v8')
    A('v_lshrrev_b32 v9, 5, v1')
    A('v_lshl_add_u32 v8, v9, 4, v8')
    A('s_mul_i32 s%d, s%d, %d' % (sO0, sSEG, 32 * 896))
    A('s_lshl_b32 s%d, s%d, 7' % (sT0, sN))
    A('s_add_u32 s%d, s%d, s%d' % (sO0, sO0, sT0))
    A('s_lshl_b32 s%d, s%d, 5' % (sT0, S_W))
    A('s_add_u32 s%d, s%d, s%d' % (sO0, sO0, sT0))
    A('s_waitcnt lgkmcnt(0)')
    A('buffer_load_dwordx4 %s, v8, %s, s%d offen' % (v(XV, 4), AUX, sO0))
    A('s_add_u32 s%d, s%d, %d' % (sT0, sCNT, L.ctl(L.C_U)))
    wait_cnt(A, 'T_O_u', sT0, 28)
    wrap.srd(A, 4, 80, 2048 * 448 * 2)
    A('s_lshl_b32 s%d, s%d, 2' % (sWT0, sSEG))
    A('s_add_u32 s%d, s%d, s%d' % (sWT0, sWT0, S_W))
    A('s_mul_i32 s%d, s%d, %d' % (sX, sWT0, 4 * L.TILE))
    A('s_lshl_b32 s%d, s%d, 12' % (sT0, sN))
    A('s_add_u32 s%d, s%d, s%d' % (sX, sX, sT0))
    A('s_add_u32 s%d, s%d, %d' % (sX, sX, L.UF))
    for hh in range(4):
        for k in range(4):
            A('buffer_load_dwordx4 %s, v%d, %s, s%d offen offset:%d sc1' % (a(16 * hh + 4 * k, 4), V_L16, WS, sX, k * 1024))
        A('s_add_u32 s%d, s%d, %d' % (sX, sX, L.TILE))
    A('s_add_u32 s%d, s%d, %d' % (sT0, sCNT, L.ctl(L.C_F)))
    wait_cnt(A, 'T_O_f', sT0, 8)
    A('s_mul_i32 s%d, s%d, %d' % (sX, sSEG, 56 * 4096))
    A('s_lshl_b32 s%d, s%d, 13' % (sT0, sN))
    A('s_add_u32 s%d, s%d, s%d' % (sX, sX, sT0))
    A('s_lshl_b32 s%d, s%d, 11' % (sT0, S_W))
    A('s_add_u32 s%d, s%d, s%d' % (sX, sX, sT0))
    A('s_add_u32 s%d, s%d, %d' % (sX, sX, L.FF))
    for fq in range(4):
        for k in range(2):
            A('buffer_load_dwordx4 %s, v%d, %s, s%d offen offset:%d sc1' % (v(FP + 8 * fq + 4 * k, 4), V_L16, WS, sX, k * 1024))
        A('s_add_u32 s%d, s%d, %d' % (sX, sX, 14 * 4096))
    A('s_lshl_b32 s%d, s%d, 13' % (sT0, S_W))
    A('v_add_u32 v9, s%d, v%d' % (sT0, V_L16))
    A('s_lshl_b32 s%d, s%d, 11' % (sT0, S_W))
    A('v_add_u32 v10, s%d, v%d' % (sT0, V_L16))
    A('s_waitcnt vmcnt(0)')
    for k in range(4):
        A('v_pk_add_f32 %s, %s, %s' % (v(FP + 2 * k, 2), v(FP + 2 * k, 2), v(FP + 8 + 2 * k, 2)))
        A('v_pk_add_f32 %s, %s, %s' % (v(FP + 16 + 2 * k, 2), v(FP + 16 + 2 * k, 2), v(FP + 24 + 2 * k, 2)))
        A('v_pk_add_f32 %s, %s, %s' % (v(FP + 2 * k, 2), v(FP + 2 * k, 2), v(FP + 16 + 2 * k, 2)))
        A('v_cvt_pk_bf16_f32 v%d, v%d, v%d' % (FP + 8 + k, FP + 2 * k, FP + 2 * k + 1))
        A('v_lshlrev_b32 v%d, 16, v%d' % (FP + 2 * k, FP + 8 + k))
        A('v_and_b32 v%d, 0xffff0000, v%d' % (FP + 2 * k + 1, FP + 8 + k))
        A('v_lshlrev_b32 v%d, 16, v%d' % (XV + 4 + 2 * k, XV + k))
        A('v_and_b32 v%d, 0xffff0000, v%d' % (XV + 5 + 2 * k, XV + k))
    A('s_lshl_b32 s%d, s%d, 13' % (sX, sWT0))
    A('s_add_u32 s%d, s%d, %d' % (sX, sX, L.PX))
    A('s_add_u32 s%d, s%d, 4096' % (sXS, sX))
    A('s_lshl_b32 s%d, s%d, 11' % (sO1, sWT0))
    A('s_add_u32 s%d, s%d, %d' % (sO1, sO1, L.PM))
    A('s_mul_i32 s%d, s%d, %d' % (sYS, sWT0, 28 * 1024))
    A('s_lshl_b32 s%d, s%d, 11' % (sT0, sN))
    A('s_add_u32 s%d, s%d, s%d' % (sYS, sYS, sT0))
    A('s_add_u32 s%d, s%d, %d' % (sYS, sYS, L.YF))
    A('s_add_u32 s%d, s%d, %d' % (sOS, sYS, 14 * 1024))
    A('s_add_u32 s%d, s%d, %d' % (sT0, sCNT, L.ctl(L.C_P)))
    wait_cnt(A, 'T_O_p', sT0, 16)
    for k in range(8):
        A('buffer_load_dwordx4 %s, v%d, %s, s%d offen offset:%d sc1' % (v(PXR + 4 * k, 4), V_L16, WS, sX if k < 4 else sXS, (k & 3) * 1024))
    for k in range(2):
        A('buffer_load_dwordx4 %s, v%d, %s, s%d offen offset:%d sc1' % (v(PMR + 4 * k, 4), V_L16, WS, sO1, k * 1024))
    for k in range(8):
        hh, tb = k >> 1, k & 1
        A('s_waitcnt vmcnt(%d)' % (9 - k))
        for c in range(2):
            acc = v(AC + 16 * c, 16)
            A('%s %s, %s, %s, %s' % (MF32, acc, a(16 * hh + 8 * c + 4 * tb, 4), v(PXR + 4 * k, 4), acc if k else '0'))
    A('s_lshl_b32 s%d, s%d, 7' % (sT0, sSG))
    A('s_add_u32 s%d, s%d, %d' % (sT0, sT0, L.ctl(L.C_Y)))
    wait_cnt(A, 'T_O_y', sT0, 28)
    for pp in range(2):
        for c in range(2):
            A('buffer_load_dwordx4 %s, v%d, %s, s%d offen offset:%d sc1' % (v(YR + 8 * pp + 4 * c, 4), V_L16, WS, (sYS, sOS)[pp], c * 1024))
    for pp in range(2):
        for c in range(2):
            A('s_waitcnt vmcnt(%d)' % (3 - 2 * pp - c))
            acc = v(AC + 16 * c, 16)
            A('%s %s, %s, %s, %s' % (MF32, acc, v(YR + 8 * pp + 4 * c, 4), v(PMR + 4 * pp, 4), acc))
    for k in range(8):
        A('ds_write_b128 v9, %s offset:%d' % (v(AC + 4 * k, 4), k * 1024))
    A('s_waitcnt lgkmcnt(0)')
    A('s_barrier')
    for src in range(4):
        for k in range(2):
            A('ds_read_b128 %s, v10 offset:%d' % (v(RR + 8 * src + 4 * k, 4), src * 8192 + k * 1024))
    A('s_waitcnt lgkmcnt(0)')
    for k in range(4):
        x = RR + 2 * k
        A('v_pk_add_f32 %s, %s, %s' % (v(x, 2), v(x, 2), v(x + 8, 2)))
        A('v_pk_add_f32 %s, %s, %s' % (v(x + 16, 2), v(x + 16, 2), v(x + 24, 2)))
        A('v_pk_add_f32 %s, %s, %s' % (v(x, 2), v(x, 2), v(x + 16, 2)))
        for add in (XV + 4 + 2 * k, FP + 2 * k):
            A('v_cvt_pk_bf16_f32 v%d, v%d, v%d' % (x + 8, x, x + 1))
            A('v_lshlrev_b32 v%d, 16, v%d' % (x, x + 8))
            A('v_and_b32 v%d, 0xffff0000, v%d' % (x + 1, x + 8))
            A('v_pk_add_f32 %s, %s, %s' % (v(x, 2), v(x, 2), v(add, 2)))
        A('v_cvt_pk_bf16_f32 v%d, v%d, v%d' % (XV + k, x, x + 1))
    A('buffer_store_dwordx4 %s, v8, %s, s%d offen' % (v(XV, 4), AUX, sO0))
    A('s_branch W_next')


def workers(A):
    task_QU(A)
    task_H(A)
    task_F(A)
    task_T(A)
    task_S(A)
    task_O(A)
    for k in 'QUHF':
        engine(A, k)
```

```python
from asm import *
import layout as L

HEAD = '''.amdgcn_target "amdgcn-amd-amdhsa--gfx950"
.text
'''


def kernel_text(name, A):
    A.fix()
    return ('.globl %s\n.p2align 8\n.type %s,@function\n%s:\n' % (name, name, name)) + A.text()


def descriptor(name, vgpr=512, accum=256, sgpr=102):
    return '''.p2align 6
.amdhsa_kernel %s
  .amdhsa_next_free_vgpr %d
  .amdhsa_next_free_sgpr %d
  .amdhsa_accum_offset %d
  .amdhsa_group_segment_fixed_size 0
  .amdhsa_kernarg_size 104
  .amdhsa_user_sgpr_count 2
  .amdhsa_user_sgpr_kernarg_segment_ptr 1
  .amdhsa_system_sgpr_workgroup_id_x 1
.end_amdhsa_kernel
''' % (name, vgpr, sgpr, accum)


def srd(A, sreg, karg_off, size):
    A('s_load_dwordx2 s[%d:%d], s[0:1], %d' % (sreg, sreg + 1, karg_off))
    A('s_mov_b32 s%d, 0x%x' % (sreg + 2, size))
    A('s_mov_b32 s%d, 0x20000' % (sreg + 3))


def build(launches, kernels):
    out = ''
    for name, g, b, lds in launches:
        out += '; @launch kernel=%s grid=(%d,1,1) block=(%d,1,1) lds=%d\n' % (name, g, b, lds)
    out += HEAD
    for name, A, vg, ac in kernels:
        out += kernel_text(name, A)
    out += '.section .rodata,"a"\n'
    for name, A, vg, ac in kernels:
        out += descriptor(name, vg, ac)
    return out
```

```python
import sys, os
from asm import *
import layout as L
import wrap, prep, work, importlib
rec = importlib.import_module(os.environ.get('REC', 'rec5'))

dbg = int(os.environ.get('DBG', 0))
if dbg == 2:
    rec.TIMER = 's_memrealtime'
P = prep.prep_kernel()
A = Asm()
work.entry(A, force_foreign=int(os.environ.get('FF', 0)))
work.workers(A)
rec.role_A(A, dbg)
rec.role_B(A, dbg, True)
rec.role_P(A, True, int(os.environ.get('NU', 0)))
txt = wrap.build([('prep_kernel', 256, 512, prep.PREP_LDS), ('main_kernel', 256, 256, work.MAIN_LDS)],
                 [('prep_kernel', P, 256, 256), ('main_kernel', A, 512, 256)])
open(sys.argv[1], 'w').write(txt)
print(len(txt))
```

```python
NSEG = 64
TILE = 28672
def _al(x, a=4096): return (x + a - 1) // a * a
off = 0
def alloc(n):
    global off
    o = off
    off = _al(off + n)
    return o
CTL = alloc(65536)
MI = alloc(NSEG * 7168)
LIS = 10240
LI = alloc(NSEG * LIS)
MX = alloc(16 * TILE)
SENT_BEG, SENT_END = MI + 7168, off
XF = alloc(NSEG * TILE)
WF = alloc(504 * TILE)
W2F = alloc(56 * TILE)
QF = alloc(NSEG * 16 * TILE)
UF = alloc(NSEG * 16 * TILE)
HF = alloc(NSEG * 4 * TILE)
YF = alloc(NSEG * 8 * 14 * 1024)
PX = alloc(NSEG * 16 * 2048)
PM = alloc(NSEG * 8 * 1024)
FF = alloc(4 * NSEG * 14 * 4096)
DBG = alloc(1 << 20)
WS_USED = off
WS_SIZE = 268435456
assert WS_USED <= WS_SIZE
def ctl(i): return CTL + i * 128
C_SEG = 0
C_U = 0
C_Q = 64
C_H = 128
C_P = 192
C_F = 256
C_FP = 320
C_FM = 336
C_Y = 400
C_ROLE = 416
C_XQ = 417
C_GQ = 424
C_T = 425
U_TARGET = 28
if __name__ == '__main__':
    for k, v in list(globals().items()):
        if isinstance(v, int): print(k, hex(v), v)
```

```python
import os, struct
from asm import *
from util import *
import layout as L
import wrap

WS, RO, CO, XS, M0S = 's[8:11]', 's[12:15]', 's[16:19]', 's[20:23]', 's[24:27]'
WB = 448 * 4096 * 2
SC = ' sc1' if os.environ.get('PSC', '1') == '1' else ''
PREP_LDS = 7 * 16384


def f32(x):
    return '0x%08x' % struct.unpack('<I', struct.pack('<f', x))[0]


DBG = int(os.environ.get('DBG', 0))


def pstamp(A, k, sGW):
    if not DBG:
        return
    A('s_memrealtime s[50:51]')
    A('s_lshl_b32 s52, s%d, 5' % sGW)
    A('s_add_u32 s52, s52, %d' % (L.DBG + 0xc0000 + 4 * k))
    A('s_waitcnt lgkmcnt(0)')
    A('v_mov_b32 v250, s50')
    A('v_mov_b32 v251, 0')
    A('buffer_store_dword v250, v251, s[8:11], s52 offen')


def prep_kernel():
    A = Asm()
    if DBG:
        A('s_memrealtime s[48:49]')
    sW, sH, sHALF, sCT, sGW, sW1, sROW, sOWN, sT0, sT1, sT2, sOUT, sMAT, sC = range(28, 42)
    sC2 = 42
    DA, RA = 8, 16
    XR, F, T = 24, 32, 48
    COL, ACC, RW, EP = 64, 128, 160, 192
    A('s_cmp_ge_u32 s2, 256')
    A('s_cbranch_scc1 P_quit')
    wrap.srd(A, 8, 96, L.WS_SIZE)
    wrap.srd(A, 20, 0, 2048 * 448 * 2)
    wrap.srd(A, 24, 8, 8 * 448 * 2)
    A('s_bfe_u32 s%d, s2, 0x10006' % sMAT)
    A('s_cmp_eq_u32 s%d, 0' % sMAT)
    A('s_cbranch_scc0 P_srdB')
    wrap.srd(A, 12, 16, WB)
    wrap.srd(A, 16, 24, WB)
    A('s_branch P_srd')
    A.label('P_srdB')
    wrap.srd(A, 12, 32, WB)
    wrap.srd(A, 16, 40, WB)
    A.label('P_srd')
    A('v_and_b32 v1, 63, v0')
    A('v_lshrrev_b32 v2, 6, v0')
    A('v_readfirstlane_b32 s%d, v2' % sW)
    A('s_and_b32 s%d, s2, 7' % sH)
    A('s_lshl_b32 s%d, s%d, 1' % (sH, sH))
    A('s_lshr_b32 s%d, s2, 7' % sT0)
    A('s_add_u32 s%d, s%d, s%d' % (sH, sH, sT0))
    A('s_bfe_u32 s%d, s2, 0x10003' % sHALF)
    A('s_bfe_u32 s%d, s2, 0x20004' % sT0)
    A('s_lshl_b32 s%d, s%d, 2' % (sCT, sT0))
    A('s_cmp_eq_u32 s%d, 3' % sT0)
    A('s_cselect_b32 s%d, 11, s%d' % (sCT, sCT))
    A('s_add_u32 s%d, s%d, s%d' % (sCT, sCT, sW))
    A('s_lshr_b32 s%d, s%d, 1' % (sT0, sT0))
    A('s_add_u32 s%d, s%d, s%d' % (sC, sT0, sW))
    A('s_lshl_b32 s%d, s2, 2' % sGW)
    A('s_add_u32 s%d, s%d, s%d' % (sGW, sGW, sW))
    A('v_and_b32 v2, 31, v1')
    A('v_lshrrev_b32 v3, 5, v1')
    A('v_mul_u32_u24 v4, 896, v3')
    A('v_lshl_add_u32 v4, v2, 4, v4')
    A('v_mov_b32 v5, 0x%x' % OOB)
    A('v_cmp_gt_u32 s[44:45], 28, v2')
    A('v_cndmask_b32 v4, v5, v4, s[44:45]')
    A('s_mul_i32 s%d, s%d, 1792' % (sT0, sGW))
    A('v_bfe_u32 v6, v1, 2, 3')
    A('v_mul_u32_u24 v6, 896, v6')
    A('v_and_b32 v7, 3, v1')
    A('v_lshl_add_u32 v6, v7, 3, v6')
    A('v_lshl_add_u32 v6, v3, 2, v6')
    A('s_lshl_b32 s%d, s%d, 5' % (sT1, sGW))
    A('s_cmp_lt_u32 s%d, 28' % sGW)
    A('s_cselect_b32 s%d, s%d, 0x%x' % (sT1, sT1, OOB))
    A('s_waitcnt lgkmcnt(0)')
    A('buffer_load_dwordx4 %s, v4, %s, s%d offen' % (v(XR, 4), XS, sT0))
    A('buffer_load_dwordx4 %s, v4, %s, s%d offen offset:448' % (v(XR + 4, 4), XS, sT0))
    A('buffer_load_dword v7, v6, %s, s%d offen' % (M0S, sT1))
    A('s_and_b32 s%d, s%d, 1' % (sW1, sW))
    A('s_lshl_b32 s%d, s%d, 2' % (sW1, sW1))
    for k in range(8):
        A('s_xor_b32 s%d, s%d, %d' % (sT0, sW1, k))
        A('s_lshl_b32 s%d, s%d, 1' % (sT0, sT0))
        A('v_add_u32 v5, s%d, v3' % sT0)
        A('v_xor_b32 v5, v5, v2')
        A('v_lshlrev_b32 v5, 4, v5')
        A('v_lshl_add_u32 v%d, v3, 13, v5' % (DA + k))
    A('s_mul_i32 s%d, s%d, %d' % (sROW, sHALF, 224 * 8192))
    A('s_lshl_b32 s%d, s%d, 9' % (sT0, sH))
    A('s_add_u32 s%d, s%d, s%d' % (sROW, sROW, sT0))
    A('s_add_u32 s%d, s%d, 3' % (sOWN, sW))
    A('s_lshl_b32 s%d, s%d, 4' % (sT0, sMAT))
    A('s_add_u32 s%d, s%d, s%d' % (sT0, sT0, sH))
    A('s_mul_i32 s%d, s%d, 14' % (sT0, sT0))
    A('s_add_u32 s%d, s%d, s%d' % (sT0, sT0, sCT))
    A('s_mul_i32 s%d, s%d, %d' % (sOUT, sT0, L.TILE))
    A('s_mul_i32 s%d, s%d, 14336' % (sT0, sHALF))
    A('s_add_u32 s%d, s%d, s%d' % (sOUT, sOUT, sT0))
    A('s_add_u32 s%d, s%d, %d' % (sOUT, sOUT, L.WF))
    A('s_cmp_eq_u32 s%d, 4' % sC)
    A('s_cbranch_scc1 P_idle')
    A('s_cmp_eq_u32 s%d, 0' % sMAT)
    A('s_cbranch_scc0 P_B')

    def dma_q(V, r):
        for k in range(4):
            A('s_lshl_b32 s%d, s%d, 2' % (sT0, sW))
            A('s_add_u32 s%d, s%d, %d' % (sT0, sT0, 16 * r + k))
            A('s_lshl_b32 m0, s%d, 10' % sT0)
            A('s_lshl_b32 s%d, s%d, 14' % (sT0, sT0))
            A('s_add_u32 s%d, s%d, s%d' % (sT0, sT0, sROW))
            V('buffer_load_dwordx4 v%d, %s, s%d offen lds' % (DA + k, RO, sT0), 't%d' % r)

    def dma_own(V):
        A('s_lshl_b32 s%d, s%d, 4' % (sT1, sOWN))
        for hi in range(2):
            for k in range(8):
                A('s_xor_b32 s%d, s%d, %d' % (sT0, sW1, k + 8 * hi))
                A('s_add_u32 s%d, s%d, s%d' % (sT0, sT0, sT1))
                A('s_lshl_b32 m0, s%d, 10' % sT0)
                A('s_lshl_b32 s%d, s%d, 14' % (sT0, sT0))
                A('s_add_u32 s%d, s%d, s%d' % (sT0, sT0, sROW))
                V('buffer_load_dwordx4 v%d, %s, s%d offen lds' % (DA + k, RO, sT0), 't3')

    def ln(V):
        V.wait('x')
        for k in range(8):
            A('v_lshlrev_b32 v%d, 16, v%d' % (F + 2 * k, XR + k))
            A('v_and_b32 v%d, 0xffff0000, v%d' % (F + 2 * k + 1, XR + k))
        for k in range(4):
            A('v_pk_add_f32 %s, %s, %s' % (v(T + 2 * k, 2), v(F + 4 * k, 2), v(F + 4 * k + 2, 2)))
        A('v_pk_add_f32 %s, %s, %s' % (v(T, 2), v(T, 2), v(T + 2, 2)))
        A('v_pk_add_f32 %s, %s, %s' % (v(T + 4, 2), v(T + 4, 2), v(T + 6, 2)))
        A('v_pk_add_f32 %s, %s, %s' % (v(T, 2), v(T, 2), v(T + 4, 2)))
        A('v_add_f32 v%d, v%d, v%d' % (T, T, T + 1))
        red32(A, 'v_add_f32', T, T + 1)
        A('v_mul_f32 v%d, %s, v%d' % (T, f32(1.0 / 448), T))
        q = T + 2
        A('v_mov_b32 v%d, 0' % q)
        A('v_mov_b32 v%d, 0' % (q + 1))
        for k in range(8):
            d = T + 4 + 2 * (k & 1)
            A('v_pk_add_f32 %s, %s, %s op_sel_hi:[1,0] neg_lo:[0,1] neg_hi:[0,1]' % (v(d, 2), v(F + 2 * k, 2), v(T, 2)))
            A('v_pk_fma_f32 %s, %s, %s, %s' % (v(q, 2), v(d, 2), v(d, 2), v(q, 2)))
        A('v_add_f32 v%d, v%d, v%d' % (q, q, q + 1))
        A('v_cndmask_b32 v%d, 0, v%d, s[44:45]' % (q, q))
        red32(A, 'v_add_f32', q, q + 1)
        A('v_mul_f32 v%d, %s, v%d' % (q, f32(1.0 / 448), q))
        A('v_cvt_pk_bf16_f32 v%d, v%d, v%d' % (q + 1, T, q))
        A('v_lshlrev_b32 v%d, 16, v%d' % (T, q + 1))
        A('v_and_b32 v%d, 0xffff0000, v%d' % (q, q + 1))
        A('v_add_f32 v%d, %s, v%d' % (q, f32(1e-5), q))
        A('v_cvt_pk_bf16_f32 v%d, v%d, v%d' % (q, q, q))
        A('v_lshlrev_b32 v%d, 16, v%d' % (q, q))
        A('v_sqrt_f32 v%d, v%d' % (q, q))
        A('v_cvt_pk_bf16_f32 v%d, v%d, v%d' % (q, q, q))
        A('v_lshlrev_b32 v%d, 16, v%d' % (q, q))
        rc = T + 4
        A('v_rcp_f32 v%d, v%d' % (rc, q))
        for k in range(8):
            x = v(F + 2 * k, 2)
            a1, a2 = T + 6 + 4 * (k & 1), T + 8 + 4 * (k & 1)
            A('v_pk_add_f32 %s, %s, %s op_sel_hi:[1,0] neg_lo:[0,1] neg_hi:[0,1]' % (x, x, v(T, 2)))
            A('v_cvt_pk_bf16_f32 v%d, v%d, v%d' % (a1, F + 2 * k, F + 2 * k + 1))
            A('v_lshlrev_b32 v%d, 16, v%d' % (F + 2 * k, a1))
            A('v_and_b32 v%d, 0xffff0000, v%d' % (F + 2 * k + 1, a1))
            A('v_pk_mul_f32 %s, %s, %s op_sel_hi:[1,0]' % (v(a1, 2), x, v(rc, 2)))
            A('v_pk_fma_f32 %s, %s, %s, %s op_sel_hi:[1,0,1] neg_lo:[1,0,0] neg_hi:[1,0,0]' % (v(a2, 2), v(a1, 2), v(q, 2), x))
            A('v_pk_fma_f32 %s, %s, %s, %s op_sel_hi:[1,0,1]' % (v(a1, 2), v(a2, 2), v(rc, 2), v(a1, 2)))
            A('v_cvt_pk_bf16_f32 v%d, v%d, v%d' % (XR + k, a1, a1 + 1))
        A('v_lshlrev_b32 v4, 9, v2')
        A('v_lshl_add_u32 v4, v3, 4, v4')
        A('v_mov_b32 v5, 0x%x' % OOB)
        A('v_cndmask_b32 v4, v5, v4, s[44:45]')
        A('s_lshr_b32 s%d, s%d, 4' % (sT0, sGW))
        A('s_mul_i32 s%d, s%d, %d' % (sT0, sT0, L.TILE))
        A('s_and_b32 s%d, s%d, 15' % (sT1, sGW))
        A('s_lshl_b32 s%d, s%d, 5' % (sT1, sT1))
        A('s_add_u32 s%d, s%d, s%d' % (sT0, sT0, sT1))
        A('s_add_u32 s%d, s%d, %d' % (sT0, sT0, L.XF))
        A('s_add_u32 s%d, s%d, 14336' % (sT1, sT0))
        V('buffer_store_dwordx4 %s, v4, %s, s%d offen%s' % (v(XR, 4), WS, sT0, SC))
        V('buffer_store_dwordx4 %s, v4, %s, s%d offen%s' % (v(XR + 4, 4), WS, sT1, SC))
        A('v_lshlrev_b32 v4, 4, v1')
        A('s_cmp_lt_u32 s%d, 64' % sGW)
        A('s_cselect_b32 s%d, 0, -1' % sT0)
        for k in range(4):
            A('v_mov_b32 v%d, s%d' % (F + k, sT0))
            A('v_mov_b32 v%d, -1' % (F + 4 + k))
        A('s_lshl_b32 s%d, s%d, 10' % (sT0, sGW))
        A('s_add_u32 s%d, s%d, 0x100000' % (sT1, sT0))
        A('s_sub_u32 s%d, s%d, 64' % (sT2, sGW))
        A('s_cmp_lt_u32 s%d, 7' % sT2)
        A('s_cselect_b32 s%d, 0x%x, s%d' % (sT0, OOB, sT0))
        A('s_cmp_ge_u32 s%d, 0x%x' % (sT1, L.SENT_END))
        A('s_cselect_b32 s%d, 0x%x, s%d' % (sT1, OOB, sT1))
        V('buffer_store_dwordx4 %s, v4, %s, s%d offen%s' % (v(F, 4), WS, sT0, SC))
        V('buffer_store_dwordx4 %s, v4, %s, s%d offen%s' % (v(F + 4, 4), WS, sT1, SC))
        A('v_min_u32 v7, -2, v7')
        A('v_lshlrev_b32 v6, 2, v1')
        A('s_lshl_b32 s%d, s%d, 8' % (sT0, sGW))
        A('s_add_u32 s%d, s%d, %d' % (sT0, sT0, L.MI))
        A('s_cmp_lt_u32 s%d, 28' % sGW)
        A('s_cselect_b32 s%d, s%d, 0x%x' % (sT0, sT0, OOB))
        V('buffer_store_dword v7, v6, %s, s%d offen%s' % (WS, sT0, SC))

    def newvm():
        V = VM(A)
        V.ops += ['x', 'x', 'x']
        return V

    def compute(V, mat):
        pi_lane(A, 4, 2, 5)
        A('v_and_b32 v5, 15, v4')
        A('v_xor_b32 v5, v5, v3')
        for k in range(8):
            A('v_xor_b32 v6, %d, v5' % (2 * k))
            A('v_lshlrev_b32 v6, 4, v6')
            A('v_lshl_add_u32 v%d, v4, 9, v6' % (RA + k))
        A('v_lshlrev_b32 v4, 4, v1')
        if mat == 0:
            c = f32(0.0625 * 1.4426950408889634)
            A('s_mov_b32 s%d, %s' % (sC2, c))
            A('s_mov_b32 s%d, %s' % (sC2 + 1, c))
        steps = [(r_, ke) for r_ in range(7) for ke in range(16)]
        LA = 6
        nread = 0

        def rd(i):
            r_, ke = steps[i]
            if ke == 0 and r_ <= 3:
                V.wait('t%d' % r_)
                A('s_barrier')
                if DBG and r_ in (0, 3):
                    A('s_memrealtime s[%d:%d]' % ((54, 55) if r_ == 0 else (56, 57)))
                    A('s_waitcnt lgkmcnt(0)')
            if r_ == 4 and ke < 8:
                A('v_add_u32 v%d, 0x10000, v%d' % (RA + ke, RA + ke))
            A('ds_read_b128 %s, v%d offset:%d' % (v(RW + 4 * (i % 8), 4), RA + (ke & 7), (r_ & 3) * 16384 + (ke >> 3) * 256))

        def epi(r_):
            acc = ACC + 16 * (r_ & 1)
            out = []
            for hf in range(2):
                for k in range(4):
                    x = acc + 8 * hf + 2 * k
                    if mat == 0:
                        out.append('v_pk_mul_f32 %s, %s, s[%d:%d]' % (v(x, 2), v(x, 2), sC2, sC2 + 1))
                    out.append('v_cvt_pk_bf16_f32 v%d, v%d, v%d' % (EP + 4 * hf + k, x, x + 1))
                out.append(('st', 'buffer_store_dwordx4 %s, v4, %s, s%d offen offset:%d%s' % (v(EP + 4 * hf, 4), WS, sOUT, hf * 1024, SC)))
            out.append('s_add_u32 s%d, s%d, 2048' % (sOUT, sOUT))
            return out
        pend = []

        def drain(n):
            while pend and n > 0:
                x = pend.pop(0)
                if isinstance(x, tuple):
                    V(x[1])
                else:
                    A(x)
                n -= 1
        for i in range(LA):
            rd(i)
        for i, (r_, ke) in enumerate(steps):
            acc = v(ACC + 16 * (r_ & 1), 16)
            ahead = min(len(steps) - 1, i + LA - 1) - i
            A('s_waitcnt lgkmcnt(%d)' % ahead)
            A('%s %s, %s, %s, %s' % (MF32, acc, v(RW + 4 * (i % 8), 4), v(COL + 4 * ke, 4), acc if ke else '0'))
            if i + LA < len(steps):
                rd(i + LA)
            if ke == 2 and r_ > 0:
                pend += epi(r_ - 1)
            drain(3)
        pend += epi(6)
        drain(100)
        if DBG:
            pstamp(A, 1, sGW)
            A('s_waitcnt vmcnt(0)')
            pstamp(A, 2, sGW)
            A('v_mov_b32 v250, s48')
            A('buffer_store_dword v250, v251, s[8:11], s52 offen offset:4')
            A('v_mov_b32 v250, s54')
            A('buffer_store_dword v250, v251, s[8:11], s52 offen offset:8')
            A('v_mov_b32 v250, s56')
            A('buffer_store_dword v250, v251, s[8:11], s52 offen offset:12')
        A('s_endpgm')

    V = newvm()
    pi_lane(A, 4, 2, 5)
    A('v_lshlrev_b32 v4, 13, v4')
    A('v_lshl_add_u32 v4, v3, 4, v4')
    A('s_lshl_b32 s%d, s%d, 18' % (sT0, sCT))
    A('s_lshl_b32 s%d, s%d, 9' % (sT1, sH))
    A('s_add_u32 s%d, s%d, s%d' % (sT2, sT0, sT1))
    dma_q(V, 0)
    for ke in range(16):
        V('buffer_load_dwordx4 %s, v4, %s, s%d offen offset:%d' % (v(COL + 4 * ke, 4), CO, sT2, ke * 32), 't0')
    dma_q(V, 1)
    dma_q(V, 2)
    dma_own(V)
    ln(V)
    compute(V, 0)
    A.label('P_B')
    V = newvm()
    A('v_lshrrev_b32 v4, 2, v1')
    A('v_mul_u32_u24 v4, 896, v4')
    A('v_and_b32 v5, 3, v1')
    A('v_lshl_add_u32 v4, v5, 4, v4')
    A('s_mul_i32 s%d, s%d, %d' % (sT2, sH, 256 * 896))
    A('s_lshl_b32 s%d, s%d, 6' % (sT0, sCT))
    A('s_add_u32 s%d, s%d, s%d' % (sT2, sT2, sT0))
    A('s_lshl_b32 s%d, s%d, 14' % (sT1, sOWN))
    for n in range(16):
        A('s_add_u32 m0, s%d, %d' % (sT1, n * 1024))
        V('buffer_load_dwordx4 v4, %s, s%d offen lds' % (CO, sT2), 'col')
        A('s_add_u32 s%d, s%d, %d' % (sT2, sT2, 16 * 896))
    dma_q(V, 0)
    dma_q(V, 1)
    dma_q(V, 2)
    ln(V)
    tr_addr(A, 4, 5)
    A('s_lshl_b32 s%d, s%d, 14' % (sT1, sOWN))
    A('v_add_u32 v4, s%d, v4' % sT1)
    V.wait('col')
    for ke in range(16):
        for u in range(2):
            A('ds_read_b64_tr_b16 %s, v4 offset:%d' % (v(COL + 4 * ke + 2 * u, 2), ke * 1024 + u * 256))
    A('s_waitcnt lgkmcnt(0)')
    dma_own(V)
    compute(V, 1)
    A.label('P_idle')
    V = newvm()
    for r_ in range(3):
        dma_q(V, r_)
    dma_own(V)
    ln(V)
    for r_ in range(4):
        V.wait('t%d' % r_)
        A('s_barrier')
    A.label('P_quit')
    A('s_endpgm')
    return A


if __name__ == '__main__':
    import sys
    A = prep_kernel()
    txt = wrap.build([('prep_kernel', 256, 256, PREP_LDS)], [('prep_kernel', A, 256, 256)])
    open(sys.argv[1], 'w').write(txt)
    print(len(txt))
```

```python
import os
from asm import *
from util import *
import layout as L
import wrap

WS = 's[8:11]'
AUX = 's[4:7]'
S_ROLE, S_W, S_MODE, S_SPIN = 12, 13, 15, 25
sTASK, sT0, sT1, sT2, sT3 = 16, 17, 18, 19, 20
sWT0, sWT1, sX, sXS, sO0, sO1, sOS, sCNT, sCS, sN, sI, sRB, sWB, sDEP, sYS, sSEG, sSG = 26, 27, 28, 29, 30, 31, 32, 33, 34, 35, 36, 37, 38, 39, 40, 41, 42
V_L16, V_Z, V_SIG, V_ONE, V_RD, V_T = 2, 3, 4, 5, 6, 7
SLOT = 131072
MAIN_LDS = SLOT + 64
WSPIN = int(os.environ.get('WSPIN', 1 << 16))
N_T, N_H, N_F = 28, 56, 64
G_S, G_O = 16, 28
N_PRE = N_T + N_H + N_F
N_ALL = N_PRE + 16 * (G_S + G_O)
K_ROLE, K_QU, K_GQ = 0, 1, 2
for _t in range(704):
    assert (_t * 1490) >> 16 == _t // 44
for _t in range(112):
    assert (_t * 4682) >> 16 == _t // 14
for _t in range(56):
    assert (_t * 9363) >> 16 == _t // 7


DBG = int(os.environ.get('DBG', 0))
sCODE = 43


def tstamp(A, k):
    if not DBG:
        return
    A('s_memrealtime s[44:45]')
    A('s_lshl_b32 s46, s%d, 5' % sCODE)
    A('s_add_u32 s46, s46, %d' % (L.DBG + 0x80000 + 4 * k))
    A('s_waitcnt lgkmcnt(0)')
    A('v_mov_b32 v%d, s44' % V_T)
    A('buffer_store_dword v%d, v%d, %s, s46 offen' % (V_T, V_SIG, WS))


def wait_cnt(A, tag, s_addr, target, sleep=4):
    A.label(tag)
    A('buffer_load_dword v%d, v%d, %s, s%d offen sc1' % (V_T, V_Z, WS, s_addr))
    A('s_waitcnt vmcnt(0)')
    A('v_readfirstlane_b32 s%d, v%d' % (sT3, V_T))
    A('s_cmp_ge_u32 s%d, %d' % (sT3, target))
    A('s_cbranch_scc1 %s_ok' % tag)
    A('s_sub_u32 s%d, s%d, 1' % (S_SPIN, S_SPIN))
    A('s_cbranch_scc1 abort')
    A('s_sleep %d' % sleep)
    A('s_branch %s' % tag)
    A.label(tag + '_ok')


def check(regs, t):
    out = []
    regs = list(regs)
    out.append('v_max3_u32 v%d, v%d, v%d, v%d' % (t, regs[0], regs[1], regs[2]))
    rest = regs[3:]
    while len(rest) >= 2:
        out.append('v_max3_u32 v%d, v%d, v%d, v%d' % (t, t, rest[0], rest[1]))
        rest = rest[2:]
    if rest:
        out.append('v_max_u32 v%d, v%d, v%d' % (t, t, rest[0]))
    out.append('v_cmp_eq_u32 vcc, -1, v%d' % t)
    return out


def pop(A, s_addr, inc, dst):
    A('v_mov_b32 v%d, %s' % (V_T, inc))
    A('s_mov_b64 exec, 1')
    A('buffer_atomic_add v%d, v%d, %s, s%d offen sc0 sc1' % (V_T, V_Z, WS, s_addr))
    A('s_mov_b64 exec, -1')
    A('s_waitcnt vmcnt(0)')
    A('v_readfirstlane_b32 s%d, v%d' % (dst, V_T))


def entry(A, force_foreign=False):
    wrap.srd(A, 8, 96, L.WS_SIZE)
    if DBG:
        A('s_memrealtime s[48:49]')
    A('v_and_b32 v1, 63, v0')
    A('v_lshrrev_b32 v2, 6, v0')
    A('v_readfirstlane_b32 s%d, v2' % S_W)
    A('v_lshlrev_b32 v%d, 4, v1' % V_L16)
    A('v_mov_b32 v%d, 0' % V_Z)
    A('v_mov_b32 v%d, 1' % V_ONE)
    A('v_mov_b32 v%d, 0x%x' % (V_SIG, OOB))
    A('v_cmp_eq_u32 vcc, 0, v0')
    A('v_cndmask_b32 v%d, v%d, v%d, vcc' % (V_SIG, V_SIG, V_Z))
    A('s_mov_b32 s%d, %d' % (S_SPIN, WSPIN))
    A('s_waitcnt lgkmcnt(0)')
    A('s_cmp_lg_u32 s%d, 0' % S_W)
    A('s_cbranch_scc1 W_bcast')
    A('s_getreg_b32 s%d, hwreg(HW_REG_XCC_ID)' % sT0)
    A('s_and_b32 s%d, s%d, 7' % (sT0, sT0))
    if force_foreign:
        A('s_bfe_u32 s%d, s2, 0x30003' % sT0)
    A('s_lshl_b32 s%d, s%d, 7' % (sT1, sT0))
    A('s_add_u32 s%d, s%d, %d' % (sT1, sT1, L.ctl(L.C_ROLE)))
    if force_foreign:
        A('s_cmp_eq_u32 s%d, 0' % sT0)
        A('s_cselect_b32 s%d, 0x10001, 1' % sT3)
        pop(A, sT1, 's%d' % sT3, sT2)
    else:
        pop(A, sT1, '1', sT2)
    A('s_and_b32 s%d, s%d, 0xffff' % (sT2, sT2))
    A('s_cmp_ge_u32 s%d, 32' % sT2)
    A('s_cbranch_scc1 W_scan')
    A('s_lshl_b32 s%d, s%d, 5' % (sT0, sT0))
    A('s_add_u32 s%d, s%d, s%d' % (sTASK, sT0, sT2))
    A('s_branch W_pub')
    A.label('W_next')
    tstamp(A, 1)
    A('s_barrier')
    A('s_cmp_lg_u32 s%d, 0' % S_W)
    A('s_cbranch_scc1 W_bcast')
    A.label('W_scan')
    A('v_lshlrev_b32 v8, 7, v1')
    A('v_mov_b32 v9, 32')
    A('s_mov_b32 s%d, %d' % (sT1, L.ctl(L.C_ROLE)))
    A('buffer_load_dword v%d, v8, %s, s%d offen sc1' % (V_T, WS, sT1))
    A('s_waitcnt vmcnt(0)')
    A('v_and_b32 v%d, 0xffff, v%d' % (V_T, V_T))
    A('v_cmp_gt_u32 vcc, v9, v%d' % V_T)
    A('s_and_b32 s%d, vcc_lo, 0xff' % sT0)
    A('s_cbranch_scc0 W_gq')
    A('s_ff1_i32_b32 s%d, s%d' % (sT0, sT0))
    A('s_lshl_b32 s%d, s%d, 7' % (sT1, sT0))
    A('s_add_u32 s%d, s%d, %d' % (sT1, sT1, L.ctl(L.C_ROLE)))
    A('s_cmp_eq_u32 s%d, 0' % sT0)
    A('s_cselect_b32 s%d, 0x10001, 1' % sT3)
    pop(A, sT1, 's%d' % sT3, sT2)
    A('s_and_b32 s%d, s%d, 0xffff' % (sT2, sT2))
    A('s_cmp_ge_u32 s%d, 32' % sT2)
    A('s_cbranch_scc1 W_scan')
    A('s_lshl_b32 s%d, s%d, 5' % (sT0, sT0))
    A('s_add_u32 s%d, s%d, s%d' % (sTASK, sT0, sT2))
    A('s_branch W_pub')
    A.label('W_gq')
    A('s_mov_b32 s%d, %d' % (sT1, L.ctl(L.C_GQ)))
    pop(A, sT1, '1', sT2)
    A('s_add_u32 s%d, s%d, 256' % (sTASK, sT2))
    A.label('W_pub')
    A('v_mov_b32 v%d, s%d' % (V_T, sTASK))
    A('v_mov_b32 v8, %d' % SLOT)
    A('ds_write_b32 v8, v%d' % V_T)
    A('s_waitcnt lgkmcnt(0)')
    A.label('W_bcast')
    A('s_barrier')
    A('v_mov_b32 v8, %d' % SLOT)
    A('ds_read_b32 v%d, v8' % V_T)
    A('s_waitcnt lgkmcnt(0)')
    A('v_readfirstlane_b32 s%d, v%d' % (sTASK, V_T))
    if DBG:
        A('s_mov_b32 s%d, s%d' % (sCODE, sTASK))
        tstamp(A, 0)
        A('v_mov_b32 v%d, s48' % V_T)
        A('buffer_store_dword v%d, v%d, %s, s46 offen offset:28' % (V_T, V_SIG, WS))
    A('s_cmp_lt_u32 s%d, 32' % sTASK)
    A('s_cbranch_scc1 W_role')
    A('s_sub_u32 s%d, s%d, 32' % (sTASK, sTASK))
    A('s_cmp_lt_u32 s%d, 224' % sTASK)
    A('s_cbranch_scc1 T_QU')
    A('s_sub_u32 s%d, s%d, 224' % (sTASK, sTASK))
    A('s_cmp_lt_u32 s%d, %d' % (sTASK, N_T))
    A('s_cbranch_scc1 T_T')
    A('s_sub_u32 s%d, s%d, %d' % (sTASK, sTASK, N_T))
    A('s_cmp_lt_u32 s%d, %d' % (sTASK, N_H))
    A('s_cbranch_scc1 T_H')
    A('s_sub_u32 s%d, s%d, %d' % (sTASK, sTASK, N_H))
    A('s_cmp_lt_u32 s%d, %d' % (sTASK, N_F))
    A('s_cbranch_scc1 T_F')
    A('s_sub_u32 s%d, s%d, %d' % (sTASK, sTASK, N_F))
    A('s_cmp_ge_u32 s%d, %d' % (sTASK, N_ALL - N_PRE))
    A('s_cbranch_scc1 W_quit')
    A('s_mul_i32 s%d, s%d, 1490' % (sSG, sTASK))
    A('s_lshr_b32 s%d, s%d, 16' % (sSG, sSG))
    A('s_mul_i32 s%d, s%d, 44' % (sT0, sSG))
    A('s_sub_u32 s%d, s%d, s%d' % (sTASK, sTASK, sT0))
    A('s_cmp_lt_u32 s%d, %d' % (sTASK, G_S))
    A('s_cbranch_scc1 T_S')
    A('s_sub_u32 s%d, s%d, %d' % (sTASK, sTASK, G_S))
    A('s_branch T_O')
    A.label('W_quit')
    A('s_endpgm')
    A.label('W_role')
    A('s_mov_b32 s%d, s%d' % (S_ROLE, sTASK))
    A('s_cmp_lt_u32 s%d, 16' % S_ROLE)
    A('s_cbranch_scc1 roleA')
    A('s_sub_u32 s%d, s%d, 16' % (S_ROLE, S_ROLE))
    A('s_cmp_lt_u32 s%d, 14' % S_ROLE)
    A('s_cbranch_scc1 roleB')
    A('s_sub_u32 s%d, s%d, 14' % (S_ROLE, S_ROLE))
    A('s_branch roleP')
    A.label('abort')
    wrap.srd(A, 4, 88, 256)
    A('v_mov_b32 v2, 0xdead')
    A('v_mov_b32 v3, s%d' % sTASK)
    A('v_mov_b32 v0, 0')
    A('s_waitcnt lgkmcnt(0)')
    A('s_mov_b64 exec, 1')
    A('buffer_store_dwordx2 v[2:3], v0, s[4:7], 0 offen')
    A('s_waitcnt vmcnt(0)')
    A('s_endpgm')


ACC, XW, EP, YM = 64, 96, 128, 144
LA = 6


def signal(A, s_addr):
    A('buffer_atomic_add v%d, v%d, %s, s%d offen sc1' % (V_ONE, V_SIG, WS, s_addr))


def dma_x(A):
    out = []
    for k in range(7):
        pre = []
        if k == 0:
            pre = ['s_mov_b32 m0, s%d' % sWB]
        if k == 4:
            pre = ['s_add_u32 m0, s%d, 4096' % sWB, 's_add_u32 s%d, s%d, 4096' % (sT0, sX)]
        out.append(pre + ['buffer_load_dwordx4 v%d, %s, s%d offen offset:%d sc1 lds' % (V_L16, WS, sX if k < 4 else sT0, (k & 3) * 1024)])
    out[-1] += ['s_add_u32 s%d, s%d, s%d' % (sX, sX, sXS),
                's_add_u32 s%d, s%d, %d' % (sWB, sWB, L.TILE),
                's_cmp_ge_u32 s%d, %d' % (sWB, 3 * L.TILE),
                's_cselect_b32 s%d, %d, 0' % (sT0, 3 * L.TILE),
                's_sub_u32 s%d, s%d, s%d' % (sWB, sWB, sT0)]
    return out


def rd(i):
    return 'ds_read_b128 %s, v%d offset:%d' % (v(XW + 4 * (i % 8), 4), V_RD, i * 1024)


def mf_phase(A, uform, fill):
    fill = list(fill)
    for i in range(28):
        A('s_waitcnt lgkmcnt(%d)' % (min(27, i + LA - 1) - i))
        for t in range(2):
            acc = v(ACC + 16 * t, 16)
            w, x = a(112 * t + 4 * i, 4), v(XW + 4 * (i % 8), 4)
            A('%s %s, %s, %s, %s' % (MF32, acc, x if uform else w, w if uform else x, acc if i else '0'))
            if t == 0 and i + LA < 28:
                A(rd(i + LA))
            if t == 1 and fill and i % 2 == 1:
                for x in fill.pop(0):
                    A(x)
    assert not fill


def epilogue(A, kind):
    if kind == 'F':
        for t in range(2):
            for rq in range(4):
                A('buffer_store_dwordx4 %s, v%d, %s, s%d offen offset:%d sc1' % (v(ACC + 16 * t + 4 * rq, 4), V_L16, WS, (sO0, sO1)[t], rq * 1024))
    elif kind == 'Y':
        for sq in range(4):
            for t in range(2):
                for k in range(2):
                    x = ACC + 16 * t + 4 * sq + 2 * k
                    A('v_cvt_pk_bf16_f32 v%d, v%d, v%d' % (EP + 4 * sq + 2 * t + k, x, x + 1))
            A('buffer_store_dwordx4 %s, v%d, %s, s%d offen sc1' % (v(EP + 4 * sq, 4), V_L16, WS, sO0))
            A('s_add_u32 s%d, s%d, %d' % (sO0, sO0, 112 * 1024))
        return
    else:
        for t in range(2):
            for hf in range(2):
                e = EP + 8 * t + 4 * hf
                for k in range(4):
                    x = ACC + 16 * t + 8 * hf + 2 * k
                    A('v_cvt_pk_bf16_f32 v%d, v%d, v%d' % (e + k, x, x + 1))
                    if kind == 'H':
                        A('v_pk_max_i16 v%d, v%d, 0' % (e + k, e + k))
                A('buffer_store_dwordx4 %s, v%d, %s, s%d offen offset:%d sc1' % (v(e, 4), V_L16, WS, (sO0, sO1)[t], hf * 1024))
    A('s_add_u32 s%d, s%d, s%d' % (sO0, sO0, sOS))
    A('s_add_u32 s%d, s%d, s%d' % (sO1, sO1, sOS))


def engine(A, kind):
    tag = 'E' + kind
    A.label(tag)
    n = 0
    for t in range(2):
        for kb in range(28):
            if kb % 4 == 0:
                A('s_add_u32 s%d, s%d, %d' % (sT0, (sWT0, sWT1)[t], kb * 1024))
            A('buffer_load_dwordx4 %s, v%d, %s, s%d offen offset:%d' % (a(112 * t + 4 * kb, 4), V_L16, WS, sT0, (kb & 3) * 1024))
    A('s_mul_i32 s%d, s%d, 7168' % (sWB, S_W))
    A('s_add_u32 s%d, s%d, s%d' % (sX, sX, sWB))
    A('s_mov_b32 s%d, 0' % sRB)
    A('s_mov_b32 s%d, 0' % sI)
    A('s_waitcnt vmcnt(40)')
    for k in range(2):
        if kind == 'F':
            wait_cnt(A, tag + '_d%d' % k, sDEP, 7)
            A('s_add_u32 s%d, s%d, s%d' % (sDEP, sDEP, sCS))
        for g in dma_x(A):
            for x in g:
                A(x)
    A.label(tag + '_top')
    A('v_add_u32 v%d, s%d, v%d' % (V_RD, sRB, V_L16))
    A('s_waitcnt vmcnt(7)')
    A('s_barrier')
    for i in range(LA):
        A(rd(i))
    A('s_add_u32 s%d, s%d, %d' % (sRB, sRB, L.TILE))
    A('s_cmp_ge_u32 s%d, %d' % (sRB, 3 * L.TILE))
    A('s_cselect_b32 s%d, 0, s%d' % (sRB, sRB))
    A('s_cmp_lt_u32 s%d, 2' % sI)
    A('s_cbranch_scc1 %s_nosig' % tag)
    signal(A, sCNT)
    A('s_add_u32 s%d, s%d, s%d' % (sCNT, sCNT, sCS))
    if DBG:
        A('s_cmp_lg_u32 s%d, 2' % sI)
        A('s_cbranch_scc1 %s_nosig' % tag)
        tstamp(A, 4)
    A.label(tag + '_nosig')
    A('s_cmp_lt_u32 s%d, 1' % sI)
    A('s_cbranch_scc1 %s_noepi' % tag)
    epilogue(A, kind)
    A.label(tag + '_noepi')
    A('s_add_u32 s%d, s%d, 1' % (sI, sI))
    if kind == 'F':
        A('s_add_u32 s%d, s%d, 1' % (sT0, sI))
        A('s_cmp_ge_u32 s%d, s%d' % (sT0, sN))
        A('s_cbranch_scc1 %s_d2_ok' % tag)
        wait_cnt(A, tag + '_d2', sDEP, 7)
        A('s_add_u32 s%d, s%d, s%d' % (sDEP, sDEP, sCS))
    mf_phase(A, kind == 'U', dma_x(A))
    A('s_cmp_lt_u32 s%d, s%d' % (sI, sN))
    A('s_cbranch_scc1 %s_top' % tag)
    epilogue(A, kind)
    A('s_waitcnt vmcnt(0)')
    A('s_barrier')
    signal(A, sCNT)
    A('s_add_u32 s%d, s%d, s%d' % (sCNT, sCNT, sCS))
    signal(A, sCNT)
    if kind != 'U':
        A('s_branch W_next')
        return
    tstamp(A, 2)
    A('s_cmp_eq_u32 s%d, 0' % sYS)
    A('s_cbranch_scc1 W_next')
    A('s_mov_b32 s%d, s%d' % (sO0, sYS))
    A('s_mul_i32 s%d, s%d, 7168' % (sWB, S_W))
    A('s_add_u32 s%d, s%d, %d' % (sX, sWB, L.MX))
    A('v_add_u32 v8, s%d, v%d' % (sWB, V_L16))
    A('v_mov_b32 v%d, v%d' % (V_RD, V_L16))
    A('s_mov_b32 s%d, %d' % (sCNT, L.ctl(L.C_Y)))
    A('s_mov_b32 s%d, 0' % sI)
    A.label('EY_top')
    A('s_add_u32 s%d, s%d, 4096' % (sT0, sX))
    for k in range(7):
        A('buffer_load_dwordx4 %s, v%d, %s, s%d offen offset:%d sc1' % (v(YM + 4 * k, 4), V_L16, WS, sX if k < 4 else sT0, (k & 3) * 1024))
    A('s_waitcnt vmcnt(0)')
    for x in check(range(YM, YM + 28), V_T):
        A(x)
    A('s_cbranch_vccz EY_ok')
    A('s_sub_u32 s%d, s%d, 1' % (S_SPIN, S_SPIN))
    A('s_cbranch_scc1 abort')
    A('s_sleep 6')
    A('s_branch EY_top')
    A.label('EY_ok')
    tstamp(A, 3)
    for k in range(7):
        A('ds_write_b128 v8, %s offset:%d' % (v(YM + 4 * k, 4), k * 1024))
    A('s_waitcnt lgkmcnt(0)')
    A('s_barrier')
    for i in range(LA):
        A(rd(i))
    mf_phase(A, True, [])
    epilogue(A, 'Y')
    A('s_waitcnt vmcnt(0)')
    A('s_barrier')
    signal(A, sCNT)
    A('s_add_u32 s%d, s%d, 128' % (sCNT, sCNT))
    A('s_add_u32 s%d, s%d, %d' % (sX, sX, L.TILE))
    A('s_add_u32 s%d, s%d, 1' % (sI, sI))
    A('s_cmp_lt_u32 s%d, 16' % sI)
    A('s_cbranch_scc1 EY_top')
    A('s_branch W_next')


def task_QU(A):
    A.label('T_QU')
    A('s_and_b32 s%d, s%d, 3' % (sSEG, sTASK))
    A('s_lshr_b32 s%d, s%d, 3' % (sT0, sTASK))
    A('s_lshl_b32 s%d, s%d, 2' % (sT0, sT0))
    A('s_add_u32 s%d, s%d, s%d' % (sT0, sT0, S_W))
    A('s_mul_i32 s%d, s%d, 4682' % (sT1, sT0))
    A('s_lshr_b32 s%d, s%d, 16' % (sT1, sT1))
    A('s_mul_i32 s%d, s%d, 14' % (sT1, sT1))
    A('s_add_u32 s%d, s%d, s%d' % (sT1, sT1, sT0))
    A('s_mul_i32 s%d, s%d, %d' % (sWT0, sT1, L.TILE))
    A('s_lshl_b32 s%d, s%d, 11' % (sO0, sT1))
    A('s_mul_i32 s%d, s%d, %d' % (sT1, sSEG, 16 * L.TILE))
    A('s_add_u32 s%d, s%d, s%d' % (sO0, sO0, sT1))
    A('s_mul_i32 s%d, s%d, %d' % (sX, sSEG, L.TILE))
    A('s_add_u32 s%d, s%d, %d' % (sX, sX, L.XF))
    A('s_mov_b32 s%d, %d' % (sXS, 4 * L.TILE))
    A('s_mov_b32 s%d, %d' % (sOS, 64 * L.TILE))
    A('s_lshl_b32 s%d, s%d, 7' % (sCNT, sSEG))
    A('s_mov_b32 s%d, 512' % sCS)
    A('s_mov_b32 s%d, 16' % sN)
    A('s_lshl_b32 s%d, s%d, 10' % (sYS, sT0))
    A('s_add_u32 s%d, s%d, %d' % (sYS, sYS, L.YF))
    A('s_cmp_eq_u32 s%d, 3' % sSEG)
    A('s_cselect_b32 s%d, s%d, 0' % (sYS, sYS))
    A('s_bitcmp1_b32 s%d, 2' % sTASK)
    A('s_cselect_b32 s%d, %d, 0' % (sT0, 224 * L.TILE))
    A('s_cselect_b32 s%d, %d, 0' % (sT1, L.UF - L.QF))
    A('s_cselect_b32 s%d, %d, %d' % (sT2, L.ctl(L.C_U), L.ctl(L.C_Q)))
    A('s_add_u32 s%d, s%d, s%d' % (sWT0, sWT0, sT0))
    A('s_add_u32 s%d, s%d, %d' % (sWT0, sWT0, L.WF))
    A('s_add_u32 s%d, s%d, %d' % (sWT1, sWT0, 14 * L.TILE))
    A('s_add_u32 s%d, s%d, s%d' % (sO0, sO0, sT1))
    A('s_add_u32 s%d, s%d, %d' % (sO0, sO0, L.QF))
    A('s_add_u32 s%d, s%d, %d' % (sO1, sO0, 14 * 2048))
    A('s_add_u32 s%d, s%d, s%d' % (sCNT, sCNT, sT2))
    A('s_bitcmp1_b32 s%d, 2' % sTASK)
    A('s_cbranch_scc1 EU')
    A('s_branch EQ')


def task_H(A):
    A.label('T_H')
    A('s_mul_i32 s%d, s%d, 9363' % (sSEG, sTASK))
    A('s_lshr_b32 s%d, s%d, 16' % (sSEG, sSEG))
    A('s_mul_i32 s%d, s%d, 7' % (sT0, sSEG))
    A('s_sub_u32 s%d, s%d, s%d' % (sT0, sTASK, sT0))
    A('s_lshl_b32 s%d, s%d, 2' % (sT0, sT0))
    A('s_add_u32 s%d, s%d, s%d' % (sT0, sT0, S_W))
    A('s_mul_i32 s%d, s%d, %d' % (sWT0, sT0, 2 * L.TILE))
    A('s_add_u32 s%d, s%d, %d' % (sWT0, sWT0, L.WF + 448 * L.TILE))
    A('s_add_u32 s%d, s%d, %d' % (sWT1, sWT0, L.TILE))
    A('s_lshl_b32 s%d, s%d, 12' % (sO0, sT0))
    A('s_mul_i32 s%d, s%d, %d' % (sT1, sSEG, 32 * L.TILE))
    A('s_add_u32 s%d, s%d, s%d' % (sO0, sO0, sT1))
    A('s_add_u32 s%d, s%d, %d' % (sO0, sO0, L.HF))
    A('s_add_u32 s%d, s%d, 2048' % (sO1, sO0))
    A('s_mov_b32 s%d, %d' % (sOS, 4 * L.TILE))
    A('s_mul_i32 s%d, s%d, %d' % (sX, sSEG, 8 * L.TILE))
    A('s_add_u32 s%d, s%d, %d' % (sX, sX, L.XF))
    A('s_mov_b32 s%d, %d' % (sXS, L.TILE))
    A('s_lshl_b32 s%d, s%d, 10' % (sCNT, sSEG))
    A('s_add_u32 s%d, s%d, %d' % (sCNT, sCNT, L.ctl(L.C_H)))
    A('s_mov_b32 s%d, 128' % sCS)
    A('s_mov_b32 s%d, 8' % sN)
    A('s_mov_b32 s%d, %d' % (sT0, L.ctl(L.C_T)))
    wait_cnt(A, 'T_H_w', sT0, N_T)
    A('s_branch EH')


def task_F(A):
    A.label('T_F')
    A('s_lshr_b32 s%d, s%d, 3' % (sSEG, sTASK))
    A('s_and_b32 s%d, s%d, 7' % (sT0, sTASK))
    A('s_mul_i32 s%d, s%d, 7' % (sT0, sT0))
    A('s_lshl_b32 s%d, s%d, 1' % (sT1, S_W))
    A('s_add_u32 s%d, s%d, s%d' % (sT0, sT0, sT1))
    A('s_mul_i32 s%d, s%d, %d' % (sWT0, sT0, L.TILE))
    A('s_add_u32 s%d, s%d, %d' % (sWT0, sWT0, L.W2F))
    A('s_add_u32 s%d, s%d, %d' % (sWT1, sWT0, L.TILE))
    A('s_lshl_b32 s%d, s%d, 12' % (sO0, sT0))
    A('s_mul_i32 s%d, s%d, %d' % (sT1, sSEG, 8 * 56 * 4096))
    A('s_add_u32 s%d, s%d, s%d' % (sO0, sO0, sT1))
    A('s_add_u32 s%d, s%d, %d' % (sO0, sO0, L.FF))
    A('s_add_u32 s%d, s%d, 4096' % (sO1, sO0))
    A('s_cmp_eq_u32 s%d, 3' % S_W)
    A('s_cselect_b32 s%d, 0x%x, s%d' % (sO1, OOB, sO1))
    A('s_cselect_b32 s%d, s%d, s%d' % (sWT1, sWT0, sWT1))
    A('s_mov_b32 s%d, %d' % (sOS, 56 * 4096))
    A('s_bfe_u32 s%d, s%d, 0x20001' % (sT0, sTASK))
    A('s_lshl_b32 s%d, s%d, 5' % (sT1, sSEG))
    A('s_add_u32 s%d, s%d, s%d' % (sT0, sT0, sT1))
    A('s_mul_i32 s%d, s%d, %d' % (sX, sT0, L.TILE))
    A('s_add_u32 s%d, s%d, %d' % (sX, sX, L.HF))
    A('s_mov_b32 s%d, %d' % (sXS, 4 * L.TILE))
    A('s_lshl_b32 s%d, s%d, 10' % (sCNT, sSEG))
    A('s_add_u32 s%d, s%d, %d' % (sDEP, sCNT, L.ctl(L.C_H)))
    A('s_add_u32 s%d, s%d, %d' % (sCNT, sCNT, L.ctl(L.C_F)))
    A('s_mov_b32 s%d, 128' % sCS)
    A('s_mov_b32 s%d, 8' % sN)
    A('s_mov_b32 s%d, %d' % (sT0, L.ctl(L.C_T)))
    wait_cnt(A, 'T_F_w', sT0, N_T)
    A('s_branch EF')


def task_T(A):
    A.label('T_T')
    A('s_lshl_b32 s%d, s%d, 2' % (sT0, sTASK))
    A('s_add_u32 s%d, s%d, s%d' % (sT0, sT0, S_W))
    A('s_mul_i32 s%d, s%d, %d' % (sO0, sT0, L.TILE))
    A('s_add_u32 s%d, s%d, %d' % (sO0, sO0, L.WF + 448 * L.TILE))
    assert L.W2F == L.WF + 504 * L.TILE
    A('v_lshrrev_b32 v8, 2, v1')
    A('v_and_b32 v9, 3, v1')
    A('s_cmp_ge_u32 s%d, 14' % sTASK)
    A('s_cbranch_scc1 T_T2')
    wrap.srd(A, 4, 64, 448 * 1792 * 2)
    A('s_lshl_b32 s%d, s%d, 6' % (sX, sT0))
    A('s_mov_b32 s%d, 3584' % sXS)
    A('s_branch T_T3')
    A.label('T_T2')
    wrap.srd(A, 4, 72, 448 * 1792 * 2)
    A('s_sub_u32 s%d, s%d, 56' % (sT0, sT0))
    A('s_mul_i32 s%d, s%d, 4682' % (sT1, sT0))
    A('s_lshr_b32 s%d, s%d, 16' % (sT1, sT1))
    A('s_mul_i32 s%d, s%d, 14' % (sT2, sT1))
    A('s_sub_u32 s%d, s%d, s%d' % (sT0, sT0, sT2))
    A('s_lshl_b32 s%d, s%d, 6' % (sX, sT0))
    A('s_mul_i32 s%d, s%d, %d' % (sT1, sT1, 448 * 896))
    A('s_add_u32 s%d, s%d, s%d' % (sX, sX, sT1))
    A('s_mov_b32 s%d, 896' % sXS)
    A.label('T_T3')
    A('v_mul_lo_u32 v8, v8, s%d' % sXS)
    A('v_lshl_add_u32 v8, v9, 4, v8')
    A('s_lshl_b32 s%d, s%d, 4' % (sXS, sXS))
    A('s_mul_i32 s%d, s%d, %d' % (sWB, S_W, L.TILE))
    A('s_waitcnt lgkmcnt(0)')
    for n in range(28):
        A('s_add_u32 m0, s%d, %d' % (sWB, n * 1024))
        A('buffer_load_dwordx4 v8, %s, s%d offen lds' % (AUX, sX))
        A('s_add_u32 s%d, s%d, s%d' % (sX, sX, sXS))
    tr_addr(A, 9, 10)
    A('v_add_u32 v9, s%d, v9' % sWB)
    for q in range(4):
        A('s_waitcnt vmcnt(%d)' % (21 - 7 * q + 7 * q))
        for k in range(7):
            for u in range(2):
                A('ds_read_b64_tr_b16 %s, v9 offset:%d' % (v(16 + 28 * q + 4 * k + 2 * u, 2), (7 * q + k) * 1024 + u * 256))
        A('s_add_u32 s%d, s%d, 4096' % (sT0, sO0))
        for k in range(7):
            A('s_waitcnt lgkmcnt(%d)' % (12 - 2 * k))
            A('buffer_store_dwordx4 %s, v%d, %s, s%d offen offset:%d sc1' % (v(16 + 28 * q + 4 * k, 4), V_L16, WS, sO0 if k < 4 else sT0, (k & 3) * 1024))
        A('s_add_u32 s%d, s%d, 7168' % (sO0, sO0))
    A('s_waitcnt vmcnt(0)')
    A('s_barrier')
    A('s_mov_b32 s%d, %d' % (sT0, L.ctl(L.C_T)))
    signal(A, sT0)
    A('s_branch W_next')


def task_S(A):
    MXR, SX, SM, TT = 16, 48, 64, 128
    A.label('T_S')
    A('s_lshr_b32 s%d, s%d, 2' % (sI, sTASK))
    A('s_lshl_b32 s%d, s%d, 2' % (sSEG, sSG))
    A('s_add_u32 s%d, s%d, s%d' % (sSEG, sSEG, sI))
    A('s_and_b32 s%d, s%d, 3' % (sT0, sTASK))
    A('s_lshl_b32 s%d, s%d, 2' % (sT0, sT0))
    A('s_add_u32 s%d, s%d, s%d' % (sT0, sT0, S_W))
    A('s_lshl_b32 s%d, s%d, 4' % (sN, sSEG))
    A('s_add_u32 s%d, s%d, s%d' % (sN, sN, sT0))
    A('s_mul_i32 s%d, s%d, %d' % (sX, sSEG, L.TILE))
    A('s_add_u32 s%d, s%d, %d' % (sX, sX, L.XF))
    for kb in range(28):
        if kb and kb % 4 == 0:
            A('s_add_u32 s%d, s%d, 4096' % (sX, sX))
        A('buffer_load_dwordx4 %s, v%d, %s, s%d offen offset:%d' % (a(112 + 4 * kb, 4), V_L16, WS, sX, (kb & 3) * 1024))
    A('s_lshl_b32 s%d, s%d, 7' % (sCNT, sSEG))
    A('s_add_u32 s%d, s%d, %d' % (sT0, sCNT, L.ctl(L.C_Q)))
    wait_cnt(A, 'T_S_q', sT0, 28)
    A('s_mul_i32 s%d, s%d, %d' % (sX, sN, L.TILE))
    A('s_add_u32 s%d, s%d, %d' % (sX, sX, L.QF))
    for kb in range(28):
        if kb and kb % 4 == 0:
            A('s_add_u32 s%d, s%d, 4096' % (sX, sX))
        A('buffer_load_dwordx4 %s, v%d, %s, s%d offen offset:%d sc1' % (a(4 * kb, 4), V_L16, WS, sX, (kb & 3) * 1024))
    A('v_bfe_u32 v9, v1, 3, 2')
    A('v_lshlrev_b32 v8, 10, v9')
    A('v_lshrrev_b32 v9, 5, v1')
    A('v_lshl_add_u32 v8, v9, 9, v8')
    A('v_and_b32 v10, 7, v1')
    A('v_lshl_add_u32 v8, v10, 4, v8')
    A('s_mul_i32 s%d, s%d, %d' % (sX, sSG, L.TILE))
    A('s_lshl_b32 s%d, s%d, 7' % (sT0, sI))
    A('s_add_u32 s%d, s%d, s%d' % (sX, sX, sT0))
    A('s_add_u32 s%d, s%d, %d' % (sX, sX, L.MX))
    A('v_and_b32 v10, 31, v1')
    A('v_lshlrev_b32 v9, 2, v9')
    A('v_sub_u32 v10, v10, v9')
    A('v_mov_b32 v11, 0xff800000')
    for kb in range(28):
        A('s_waitcnt vmcnt(%d)' % (27 - kb))
        A('%s %s, %s, %s, %s' % (MF32, v(SX, 16), a(112 + 4 * kb, 4), a(4 * kb, 4), v(SX, 16) if kb else '0'))
    for r_ in range(16):
        A('v_cmp_le_i32 vcc, %d, v10' % (8 * (r_ >> 2) + (r_ & 3)))
        A('v_cndmask_b32 v%d, v11, v%d, vcc' % (SX + r_, SX + r_))
    mx = TT
    A('v_max3_f32 v%d, v%d, v%d, v%d' % (mx, SX, SX + 1, SX + 2))
    for k in range(3, 15, 2):
        A('v_max3_f32 v%d, v%d, v%d, v%d' % (mx, mx, SX + k, SX + k + 1))
    A('v_max_f32 v%d, v%d, v%d' % (mx, mx, SX + 15))
    A.label('T_S_m')
    A('s_mov_b32 s%d, s%d' % (sT0, sX))
    for k in range(7):
        A('buffer_load_dwordx4 %s, v8, %s, s%d offen sc1' % (v(MXR + 4 * k, 4), WS, sT0))
        if k < 6:
            A('s_add_u32 s%d, s%d, 4096' % (sT0, sT0))
    A('s_waitcnt vmcnt(0)')
    for x in check(range(MXR, MXR + 28), V_T):
        A(x)
    A('s_cbranch_vccz T_S_mok')
    A('s_sub_u32 s%d, s%d, 1' % (S_SPIN, S_SPIN))
    A('s_cbranch_scc1 abort')
    A('s_sleep 6')
    A('s_branch T_S_m')
    A.label('T_S_mok')
    tstamp(A, 2)
    for k in range(7):
        for q in range(4):
            acc = v(SM + 16 * q, 16)
            A('%s %s, %s, %s, %s' % (MF32, acc, v(MXR + 4 * k, 4), a(4 * (4 * k + q), 4), acc if k else '0'))
    A('s_lshl_b32 s%d, s%d, 11' % (sO0, sN))
    A('s_add_u32 s%d, s%d, %d' % (sO0, sO0, L.PX))
    A('s_lshr_b32 s%d, s%d, 1' % (sO1, sN))
    A('s_lshl_b32 s%d, s%d, 10' % (sO1, sO1))
    A('s_and_b32 s%d, s%d, 1' % (sT0, sN))
    A('s_lshl_b32 s%d, s%d, 3' % (sT0, sT0))
    A('s_add_u32 s%d, s%d, s%d' % (sO1, sO1, sT0))
    A('s_add_u32 s%d, s%d, %d' % (sO1, sO1, L.PM))
    A('s_add_u32 s%d, s%d, %d' % (sCNT, sCNT, L.ctl(L.C_P)))
    for k in range(2):
        A('v_pk_add_f32 %s, %s, %s' % (v(SM + 2 * k, 2), v(SM + 2 * k, 2), v(SM + 20 + 2 * k, 2)))
    for k in range(2):
        A('v_pk_add_f32 %s, %s, %s' % (v(SM + 40 + 2 * k, 2), v(SM + 40 + 2 * k, 2), v(SM + 60 + 2 * k, 2)))
    for k in range(2):
        A('v_pk_add_f32 %s, %s, %s' % (v(SM + 2 * k, 2), v(SM + 2 * k, 2), v(SM + 40 + 2 * k, 2)))
    assert SM == SX + 16
    A('v_max3_f32 v%d, v%d, v%d, v%d' % (mx, mx, SM, SM + 1))
    A('v_max3_f32 v%d, v%d, v%d, v%d' % (mx, mx, SM + 2, SM + 3))
    A('v_mov_b32 v%d, v%d' % (mx + 1, mx))
    A('v_permlane32_swap_b32 v%d, v%d' % (mx, mx + 1))
    A('v_max_f32 v%d, v%d, v%d' % (mx, mx, mx + 1))
    for k in range(10):
        x = v(SX + 2 * k, 2)
        A('v_pk_add_f32 %s, %s, %s op_sel_hi:[1,0] neg_lo:[0,1] neg_hi:[0,1]' % (x, x, v(mx, 2)))
        A('v_exp_f32 v%d, v%d' % (SX + 2 * k, SX + 2 * k))
        A('v_exp_f32 v%d, v%d' % (SX + 2 * k + 1, SX + 2 * k + 1))
    sm = TT + 2
    A('v_pk_add_f32 %s, %s, %s' % (v(sm, 2), v(SX, 2), v(SX + 2, 2)))
    for k in range(2, 10):
        A('v_pk_add_f32 %s, %s, %s' % (v(sm, 2), v(sm, 2), v(SX + 2 * k, 2)))
    A('v_add_f32 v%d, v%d, v%d' % (sm, sm, sm + 1))
    A('v_mov_b32 v%d, v%d' % (sm + 1, sm))
    A('v_permlane32_swap_b32 v%d, v%d' % (sm, sm + 1))
    A('v_add_f32 v%d, v%d, v%d' % (sm, sm, sm + 1))
    A('v_rcp_f32 v%d, v%d' % (sm, sm))
    o = TT + 4
    for k in range(10):
        x = v(SX + 2 * k, 2)
        A('v_pk_mul_f32 %s, %s, %s op_sel_hi:[1,0]' % (x, x, v(sm, 2)))
        A('v_cvt_pk_bf16_f32 v%d, v%d, v%d' % (o + k, SX + 2 * k, SX + 2 * k + 1))
        if k in (3, 7):
            A('buffer_store_dwordx4 %s, v%d, %s, s%d offen offset:%d sc1' % (v(o + k - 3, 4), V_L16, WS, sO0, (k >> 2) * 1024))
    A('buffer_store_dwordx2 %s, v%d, %s, s%d offen sc1' % (v(o + 8, 2), V_L16, WS, sO1))
    A('s_waitcnt vmcnt(0)')
    A('s_mov_b64 exec, 1')
    A('buffer_atomic_add v%d, v%d, %s, s%d offen sc1' % (V_ONE, V_Z, WS, sCNT))
    A('s_mov_b64 exec, -1')
    A('s_branch W_next')


def task_O(A):
    FP, XV, PXR, PMR, YR, AC, RR = 16, 48, 64, 96, 104, 128, 160
    A.label('T_O')
    wrap.srd(A, 4, 0, 2048 * 448 * 2)
    A('s_mul_i32 s%d, s%d, 9363' % (sI, sTASK))
    A('s_lshr_b32 s%d, s%d, 16' % (sI, sI))
    A('s_mul_i32 s%d, s%d, 7' % (sT0, sI))
    A('s_sub_u32 s%d, s%d, s%d' % (sN, sTASK, sT0))
    A('s_lshl_b32 s%d, s%d, 2' % (sSEG, sSG))
    A('s_add_u32 s%d, s%d, s%d' % (sSEG, sSEG, sI))
    A('s_lshl_b32 s%d, s%d, 7' % (sCNT, sSEG))
    A('v_and_b32 v8, 31, v1')
    A('v_mul_u32_u24 v8, 896, v8')
    A('v_lshrrev_b32 v9, 5, v1')
    A('v_lshl_add_u32 v8, v9, 4, v8')
    A('s_mul_i32 s%d, s%d, %d' % (sO0, sSEG, 32 * 896))
    A('s_lshl_b32 s%d, s%d, 7' % (sT0, sN))
    A('s_add_u32 s%d, s%d, s%d' % (sO0, sO0, sT0))
    A('s_lshl_b32 s%d, s%d, 5' % (sT0, S_W))
    A('s_add_u32 s%d, s%d, s%d' % (sO0, sO0, sT0))
    A('s_waitcnt lgkmcnt(0)')
    A('buffer_load_dwordx4 %s, v8, %s, s%d offen' % (v(XV, 4), AUX, sO0))
    A('s_add_u32 s%d, s%d, %d' % (sT0, sCNT, L.ctl(L.C_U)))
    wait_cnt(A, 'T_O_u', sT0, 28)
    wrap.srd(A, 4, 80, 2048 * 448 * 2)
    A('s_lshl_b32 s%d, s%d, 2' % (sWT0, sSEG))
    A('s_add_u32 s%d, s%d, s%d' % (sWT0, sWT0, S_W))
    A('s_mul_i32 s%d, s%d, %d' % (sX, sWT0, 4 * L.TILE))
    A('s_lshl_b32 s%d, s%d, 12' % (sT0, sN))
    A('s_add_u32 s%d, s%d, s%d' % (sX, sX, sT0))
    A('s_add_u32 s%d, s%d, %d' % (sX, sX, L.UF))
    for hh in range(4):
        for k in range(4):
            A('buffer_load_dwordx4 %s, v%d, %s, s%d offen offset:%d sc1' % (a(16 * hh + 4 * k, 4), V_L16, WS, sX, k * 1024))
        A('s_add_u32 s%d, s%d, %d' % (sX, sX, L.TILE))
    A('s_add_u32 s%d, s%d, %d' % (sT0, sCNT, L.ctl(L.C_F)))
    wait_cnt(A, 'T_O_f', sT0, 8)
    A('s_mul_i32 s%d, s%d, %d' % (sX, sSEG, 56 * 4096))
    A('s_lshl_b32 s%d, s%d, 13' % (sT0, sN))
    A('s_add_u32 s%d, s%d, s%d' % (sX, sX, sT0))
    A('s_lshl_b32 s%d, s%d, 11' % (sT0, S_W))
    A('s_add_u32 s%d, s%d, s%d' % (sX, sX, sT0))
    A('s_add_u32 s%d, s%d, %d' % (sX, sX, L.FF))
    for fq in range(4):
        for k in range(2):
            A('buffer_load_dwordx4 %s, v%d, %s, s%d offen offset:%d sc1' % (v(FP + 8 * fq + 4 * k, 4), V_L16, WS, sX, k * 1024))
        A('s_add_u32 s%d, s%d, %d' % (sX, sX, 14 * 4096))
    A('s_lshl_b32 s%d, s%d, 13' % (sT0, S_W))
    A('v_add_u32 v9, s%d, v%d' % (sT0, V_L16))
    A('s_lshl_b32 s%d, s%d, 11' % (sT0, S_W))
    A('v_add_u32 v10, s%d, v%d' % (sT0, V_L16))
    A('s_waitcnt vmcnt(0)')
    for k in range(4):
        A('v_pk_add_f32 %s, %s, %s' % (v(FP + 2 * k, 2), v(FP + 2 * k, 2), v(FP + 8 + 2 * k, 2)))
        A('v_pk_add_f32 %s, %s, %s' % (v(FP + 16 + 2 * k, 2), v(FP + 16 + 2 * k, 2), v(FP + 24 + 2 * k, 2)))
        A('v_pk_add_f32 %s, %s, %s' % (v(FP + 2 * k, 2), v(FP + 2 * k, 2), v(FP + 16 + 2 * k, 2)))
        A('v_cvt_pk_bf16_f32 v%d, v%d, v%d' % (FP + 8 + k, FP + 2 * k, FP + 2 * k + 1))
        A('v_lshlrev_b32 v%d, 16, v%d' % (FP + 2 * k, FP + 8 + k))
        A('v_and_b32 v%d, 0xffff0000, v%d' % (FP + 2 * k + 1, FP + 8 + k))
        A('v_lshlrev_b32 v%d, 16, v%d' % (XV + 4 + 2 * k, XV + k))
        A('v_and_b32 v%d, 0xffff0000, v%d' % (XV + 5 + 2 * k, XV + k))
    A('s_lshl_b32 s%d, s%d, 13' % (sX, sWT0))
    A('s_add_u32 s%d, s%d, %d' % (sX, sX, L.PX))
    A('s_add_u32 s%d, s%d, 4096' % (sXS, sX))
    A('s_lshl_b32 s%d, s%d, 11' % (sO1, sWT0))
    A('s_add_u32 s%d, s%d, %d' % (sO1, sO1, L.PM))
    A('s_mul_i32 s%d, s%d, %d' % (sYS, sWT0, 28 * 1024))
    A('s_lshl_b32 s%d, s%d, 11' % (sT0, sN))
    A('s_add_u32 s%d, s%d, s%d' % (sYS, sYS, sT0))
    A('s_add_u32 s%d, s%d, %d' % (sYS, sYS, L.YF))
    A('s_add_u32 s%d, s%d, %d' % (sOS, sYS, 14 * 1024))
    A('s_add_u32 s%d, s%d, %d' % (sT0, sCNT, L.ctl(L.C_P)))
    wait_cnt(A, 'T_O_p', sT0, 16)
    tstamp(A, 2)
    for k in range(8):
        A('buffer_load_dwordx4 %s, v%d, %s, s%d offen offset:%d sc1' % (v(PXR + 4 * k, 4), V_L16, WS, sX if k < 4 else sXS, (k & 3) * 1024))
    for k in range(2):
        A('buffer_load_dwordx4 %s, v%d, %s, s%d offen offset:%d sc1' % (v(PMR + 4 * k, 4), V_L16, WS, sO1, k * 1024))
    for k in range(8):
        hh, tb = k >> 1, k & 1
        A('s_waitcnt vmcnt(%d)' % (9 - k))
        for c in range(2):
            acc = v(AC + 16 * c, 16)
            A('%s %s, %s, %s, %s' % (MF32, acc, a(16 * hh + 8 * c + 4 * tb, 4), v(PXR + 4 * k, 4), acc if k else '0'))
    A('s_lshl_b32 s%d, s%d, 7' % (sT0, sSG))
    A('s_add_u32 s%d, s%d, %d' % (sT0, sT0, L.ctl(L.C_Y)))
    wait_cnt(A, 'T_O_y', sT0, 28)
    tstamp(A, 3)
    for pp in range(2):
        for c in range(2):
            A('buffer_load_dwordx4 %s, v%d, %s, s%d offen offset:%d sc1' % (v(YR + 8 * pp + 4 * c, 4), V_L16, WS, (sYS, sOS)[pp], c * 1024))
    for pp in range(2):
        for c in range(2):
            A('s_waitcnt vmcnt(%d)' % (3 - 2 * pp - c))
            acc = v(AC + 16 * c, 16)
            A('%s %s, %s, %s, %s' % (MF32, acc, v(YR + 8 * pp + 4 * c, 4), v(PMR + 4 * pp, 4), acc))
    for k in range(8):
        A('ds_write_b128 v9, %s offset:%d' % (v(AC + 4 * k, 4), k * 1024))
    A('s_waitcnt lgkmcnt(0)')
    A('s_barrier')
    for src in range(4):
        for k in range(2):
            A('ds_read_b128 %s, v10 offset:%d' % (v(RR + 8 * src + 4 * k, 4), src * 8192 + k * 1024))
    A('s_waitcnt lgkmcnt(0)')
    for k in range(4):
        x = RR + 2 * k
        A('v_pk_add_f32 %s, %s, %s' % (v(x, 2), v(x, 2), v(x + 8, 2)))
        A('v_pk_add_f32 %s, %s, %s' % (v(x + 16, 2), v(x + 16, 2), v(x + 24, 2)))
        A('v_pk_add_f32 %s, %s, %s' % (v(x, 2), v(x, 2), v(x + 16, 2)))
        for add in (XV + 4 + 2 * k, FP + 2 * k):
            A('v_cvt_pk_bf16_f32 v%d, v%d, v%d' % (x + 8, x, x + 1))
            A('v_lshlrev_b32 v%d, 16, v%d' % (x, x + 8))
            A('v_and_b32 v%d, 0xffff0000, v%d' % (x + 1, x + 8))
            A('v_pk_add_f32 %s, %s, %s' % (v(x, 2), v(x, 2), v(add, 2)))
        A('v_cvt_pk_bf16_f32 v%d, v%d, v%d' % (XV + k, x, x + 1))
    A('buffer_store_dwordx4 %s, v8, %s, s%d offen' % (v(XV, 4), AUX, sO0))
    A('s_branch W_next')


def workers(A):
    task_QU(A)
    task_H(A)
    task_F(A)
    task_T(A)
    task_S(A)
    task_O(A)
    for k in 'QUHF':
        engine(A, k)
```

```python
import os, struct
from asm import *
from util import *
import layout as L
import wrap

WS, RO, CO, XS, M0S = 's[8:11]', 's[12:15]', 's[16:19]', 's[20:23]', 's[24:27]'
WB = 448 * 4096 * 2
SC = ' sc1' if os.environ.get('PSC', '1') == '1' else ''
PREP_LDS = 10 * 16384
PD = int(os.environ.get('PD', 4))
LDEL = int(os.environ.get('LDEL', 0))


def f32(x):
    return '0x%08x' % struct.unpack('<I', struct.pack('<f', x))[0]


DBG = int(os.environ.get('DBG', 0))


def pstamp(A, k, sGW):
    if not DBG:
        return
    A('s_memrealtime s[50:51]')
    A('s_lshl_b32 s52, s%d, 6' % sGW)
    A('s_add_u32 s52, s52, %d' % (L.DBG + 0xc0000 + 4 * k))
    A('s_waitcnt lgkmcnt(0)')
    A('v_mov_b32 v250, s50')
    A('v_mov_b32 v251, 0')
    A('buffer_store_dword v250, v251, s[8:11], s52 offen')


def ps(A, k):
    if DBG:
        A('s_memrealtime s[%d:%d]' % (60 + 2 * k, 61 + 2 * k))


def prep_kernel():
    A = Asm()
    if DBG:
        A('s_memrealtime s[48:49]')
    sW, sH, sHALF, sCT, sGW, sW1, sROW, sOWN, sT0, sT1, sT2, sOUT, sMAT, sC = range(28, 42)
    sC2 = 42
    sR = 46
    DA, RA = 8, 16
    XR, F, T = 24, 32, 48
    COL, ACC, RW, EP = 64, 128, 160, 192
    A('s_cmp_ge_u32 s2, 256')
    A('s_cbranch_scc1 P_quit')
    A('v_and_b32 v1, 63, v0')
    A('v_lshrrev_b32 v2, 6, v0')
    A('v_readfirstlane_b32 s%d, v2' % sW)
    A('v_and_b32 v2, 31, v1')
    A('v_lshrrev_b32 v3, 5, v1')
    A('s_bfe_u32 s%d, s2, 0x10006' % sMAT)
    A('s_and_b32 s%d, s2, 7' % sH)
    A('s_lshl_b32 s%d, s%d, 1' % (sH, sH))
    A('s_lshr_b32 s%d, s2, 7' % sT0)
    A('s_add_u32 s%d, s%d, s%d' % (sH, sH, sT0))
    A('s_bfe_u32 s%d, s2, 0x10003' % sHALF)
    A('s_cmp_lt_u32 s%d, 4' % sW)
    A('s_cbranch_scc1 P_mul')
    A('s_cmp_eq_u32 s%d, 0' % sMAT)
    A('s_cbranch_scc0 P_srdB')
    wrap.srd(A, 12, 16, WB)
    A('s_branch P_srd')
    A.label('P_srdB')
    wrap.srd(A, 12, 32, WB)
    A.label('P_srd')
    A('s_sub_u32 s%d, s%d, 4' % (sW, sW))
    V = VM(A)
    A('s_and_b32 s%d, s%d, 1' % (sW1, sW))
    A('s_lshl_b32 s%d, s%d, 3' % (sW1, sW1))
    A('v_xor_b32 v5, v3, v2')
    A('v_xor_b32 v5, s%d, v5' % sW1)
    for k in range(4):
        A('v_xor_b32 v6, %d, v5' % (2 * k))
        A('v_lshlrev_b32 v6, 4, v6')
        A('v_lshl_add_u32 v6, v3, 13, v6')
        A('v_add_u32 v%d, %d, v6' % (DA + k, k * (16384 - 1024)))
    A('s_mul_i32 s%d, s%d, %d' % (sROW, sHALF, 224 * 8192))
    A('s_lshl_b32 s%d, s%d, 9' % (sT0, sH))
    A('s_add_u32 s%d, s%d, s%d' % (sROW, sROW, sT0))
    A('s_lshl_b32 s%d, s%d, 16' % (sT0, sW))
    A('s_add_u32 s%d, s%d, s%d' % (sROW, sROW, sT0))
    A('s_lshl_b32 m0, s%d, 12' % sW)
    if LDEL:
        A('s_sleep %d' % LDEL)
    A('s_waitcnt lgkmcnt(0)')

    def dma_q(r):
        for k in range(4):
            V('buffer_load_dwordx4 v%d, %s, s%d offen offset:%d lds' % (DA + k, RO, sROW, k * 1024), 't%d' % r)
        A('s_add_u32 s%d, s%d, %d' % (sROW, sROW, 32 * 8192))
        A('s_add_u32 m0, m0, 16384')
    for r_ in range(PD):
        dma_q(r_)
    for r_ in range(7):
        V.wait('t%d' % r_)
        A('s_barrier')
        if r_ + PD < 7:
            dma_q(r_ + PD)
    A.label('P_quit')
    A('s_endpgm')
    A.label('P_mul')
    wrap.srd(A, 8, 96, L.WS_SIZE)
    wrap.srd(A, 20, 0, 2048 * 448 * 2)
    wrap.srd(A, 24, 8, 8 * 448 * 2)
    A('s_cmp_eq_u32 s%d, 0' % sMAT)
    A('s_cbranch_scc0 P_srdB2')
    wrap.srd(A, 16, 24, WB)
    A('s_branch P_srd2')
    A.label('P_srdB2')
    wrap.srd(A, 16, 40, WB)
    A.label('P_srd2')
    A('s_lshl_b32 s%d, s2, 2' % sGW)
    A('s_add_u32 s%d, s%d, s%d' % (sGW, sGW, sW))
    A('v_mul_u32_u24 v4, 896, v3')
    A('v_lshl_add_u32 v4, v2, 4, v4')
    A('v_mov_b32 v5, 0x%x' % OOB)
    A('v_cmp_gt_u32 s[44:45], 28, v2')
    A('v_cndmask_b32 v4, v5, v4, s[44:45]')
    A('s_mul_i32 s%d, s%d, 1792' % (sT0, sGW))
    A('v_bfe_u32 v6, v1, 2, 3')
    A('v_mul_u32_u24 v6, 896, v6')
    A('v_and_b32 v7, 3, v1')
    A('v_lshl_add_u32 v6, v7, 3, v6')
    A('v_lshl_add_u32 v6, v3, 2, v6')
    A('s_lshl_b32 s%d, s%d, 5' % (sT1, sGW))
    A('s_cmp_lt_u32 s%d, 28' % sGW)
    A('s_cselect_b32 s%d, s%d, 0x%x' % (sT1, sT1, OOB))
    A('s_waitcnt lgkmcnt(0)')
    ps(A, 0)
    A('buffer_load_dwordx4 %s, v4, %s, s%d offen' % (v(XR, 4), XS, sT0))
    A('buffer_load_dwordx4 %s, v4, %s, s%d offen offset:448' % (v(XR + 4, 4), XS, sT0))
    A('buffer_load_dword v7, v6, %s, s%d offen' % (M0S, sT1))
    A('s_bfe_u32 s%d, s2, 0x20004' % sT0)
    A('s_lshl_b32 s%d, s%d, 2' % (sCT, sT0))
    A('s_cmp_eq_u32 s%d, 3' % sT0)
    A('s_cselect_b32 s%d, 11, s%d' % (sCT, sCT))
    A('s_add_u32 s%d, s%d, s%d' % (sCT, sCT, sW))
    A('s_lshr_b32 s%d, s%d, 1' % (sT0, sT0))
    A('s_add_u32 s%d, s%d, s%d' % (sC, sT0, sW))
    A('s_sub_u32 s%d, 9, s%d' % (sOWN, sW))
    A('s_lshl_b32 s%d, s%d, 14' % (sOWN, sOWN))
    A('s_mov_b32 m0, s%d' % sOWN)
    A('s_mov_b32 s%d, 0' % sR)
    A('s_cmp_eq_u32 s%d, 4' % sC)
    A('s_cbranch_scc1 P_x0')
    A('s_cmp_eq_u32 s%d, 0' % sMAT)
    A('s_cbranch_scc0 P_cB')
    A('v_xor_b32 v5, v3, v2')
    A('v_lshlrev_b32 v6, 13, v3')
    A('s_lshl_b32 s%d, s%d, 18' % (sT0, sCT))
    A('s_lshl_b32 s%d, s%d, 9' % (sT1, sH))
    A('s_add_u32 s%d, s%d, s%d' % (sT2, sT0, sT1))
    A.label('P_cA1')
    A('v_xor_b32 v4, s%d, v5' % sR)
    A('v_lshl_add_u32 v4, v4, 4, v6')
    A('s_add_u32 s%d, s%d, %d' % (sT0, sT2, 8 * 16384))
    A('buffer_load_dwordx4 v4, %s, s%d offen lds' % (CO, sT2))
    A('s_add_u32 m0, m0, 8192')
    A('s_add_u32 s%d, s%d, 16384' % (sT2, sT2))
    A('buffer_load_dwordx4 v4, %s, s%d offen lds' % (CO, sT0))
    A('s_sub_u32 m0, m0, 7168')
    A('s_add_u32 s%d, s%d, 2' % (sR, sR))
    A('s_cmp_lt_u32 s%d, 16' % sR)
    A('s_cbranch_scc1 P_cA1')
    A('s_branch P_x')
    A.label('P_cB')
    A('v_lshrrev_b32 v4, 2, v1')
    A('v_mul_u32_u24 v4, 896, v4')
    A('v_and_b32 v5, 3, v1')
    A('v_lshl_add_u32 v4, v5, 4, v4')
    A('s_mul_i32 s%d, s%d, %d' % (sT2, sH, 256 * 896))
    A('s_lshl_b32 s%d, s%d, 6' % (sT0, sCT))
    A('s_add_u32 s%d, s%d, s%d' % (sT2, sT2, sT0))
    A.label('P_cB1')
    A('buffer_load_dwordx4 v4, %s, s%d offen lds' % (CO, sT2))
    A('s_add_u32 s%d, s%d, %d' % (sT2, sT2, 16 * 896))
    A('s_add_u32 m0, m0, 1024')
    A('s_add_u32 s%d, s%d, 1' % (sR, sR))
    A('s_cmp_lt_u32 s%d, 16' % sR)
    A('s_cbranch_scc1 P_cB1')
    A('s_branch P_x')
    A.label('P_x0')
    A('s_waitcnt vmcnt(0)')
    A.label('P_x')
    ps(A, 1)
    A('s_waitcnt vmcnt(16)')
    if True:
        for k in range(8):
            A('v_lshlrev_b32 v%d, 16, v%d' % (F + 2 * k, XR + k))
            A('v_and_b32 v%d, 0xffff0000, v%d' % (F + 2 * k + 1, XR + k))
        for k in range(4):
            A('v_pk_add_f32 %s, %s, %s' % (v(T + 2 * k, 2), v(F + 4 * k, 2), v(F + 4 * k + 2, 2)))
        A('v_pk_add_f32 %s, %s, %s' % (v(T, 2), v(T, 2), v(T + 2, 2)))
        A('v_pk_add_f32 %s, %s, %s' % (v(T + 4, 2), v(T + 4, 2), v(T + 6, 2)))
        A('v_pk_add_f32 %s, %s, %s' % (v(T, 2), v(T, 2), v(T + 4, 2)))
        A('v_add_f32 v%d, v%d, v%d' % (T, T, T + 1))
        red32(A, 'v_add_f32', T, T + 1)
        A('v_mul_f32 v%d, %s, v%d' % (T, f32(1.0 / 448), T))
        q = T + 2
        A('v_mov_b32 v%d, 0' % q)
        A('v_mov_b32 v%d, 0' % (q + 1))
        for k in range(8):
            d = T + 4 + 2 * (k & 1)
            A('v_pk_add_f32 %s, %s, %s op_sel_hi:[1,0] neg_lo:[0,1] neg_hi:[0,1]' % (v(d, 2), v(F + 2 * k, 2), v(T, 2)))
            A('v_pk_fma_f32 %s, %s, %s, %s' % (v(q, 2), v(d, 2), v(d, 2), v(q, 2)))
        A('v_add_f32 v%d, v%d, v%d' % (q, q, q + 1))
        A('v_cndmask_b32 v%d, 0, v%d, s[44:45]' % (q, q))
        red32(A, 'v_add_f32', q, q + 1)
        A('v_mul_f32 v%d, %s, v%d' % (q, f32(1.0 / 448), q))
        A('v_cvt_pk_bf16_f32 v%d, v%d, v%d' % (q + 1, T, q))
        A('v_lshlrev_b32 v%d, 16, v%d' % (T, q + 1))
        A('v_and_b32 v%d, 0xffff0000, v%d' % (q, q + 1))
        A('v_add_f32 v%d, %s, v%d' % (q, f32(1e-5), q))
        A('v_cvt_pk_bf16_f32 v%d, v%d, v%d' % (q, q, q))
        A('v_lshlrev_b32 v%d, 16, v%d' % (q, q))
        A('v_sqrt_f32 v%d, v%d' % (q, q))
        A('v_cvt_pk_bf16_f32 v%d, v%d, v%d' % (q, q, q))
        A('v_lshlrev_b32 v%d, 16, v%d' % (q, q))
        rc = T + 4
        A('v_rcp_f32 v%d, v%d' % (rc, q))
        for k in range(8):
            x = v(F + 2 * k, 2)
            a1, a2 = T + 6 + 4 * (k & 1), T + 8 + 4 * (k & 1)
            A('v_pk_add_f32 %s, %s, %s op_sel_hi:[1,0] neg_lo:[0,1] neg_hi:[0,1]' % (x, x, v(T, 2)))
            A('v_cvt_pk_bf16_f32 v%d, v%d, v%d' % (a1, F + 2 * k, F + 2 * k + 1))
            A('v_lshlrev_b32 v%d, 16, v%d' % (F + 2 * k, a1))
            A('v_and_b32 v%d, 0xffff0000, v%d' % (F + 2 * k + 1, a1))
            A('v_pk_mul_f32 %s, %s, %s op_sel_hi:[1,0]' % (v(a1, 2), x, v(rc, 2)))
            A('v_pk_fma_f32 %s, %s, %s, %s op_sel_hi:[1,0,1] neg_lo:[1,0,0] neg_hi:[1,0,0]' % (v(a2, 2), v(a1, 2), v(q, 2), x))
            A('v_pk_fma_f32 %s, %s, %s, %s op_sel_hi:[1,0,1]' % (v(a1, 2), v(a2, 2), v(rc, 2), v(a1, 2)))
            A('v_cvt_pk_bf16_f32 v%d, v%d, v%d' % (XR + k, a1, a1 + 1))

        A('v_lshlrev_b32 v4, 9, v2')
        A('v_lshl_add_u32 v4, v3, 4, v4')
        A('v_mov_b32 v5, 0x%x' % OOB)
        A('v_cndmask_b32 v4, v5, v4, s[44:45]')
        A('s_lshr_b32 s%d, s%d, 4' % (sT0, sGW))
        A('s_mul_i32 s%d, s%d, %d' % (sT0, sT0, L.TILE))
        A('s_and_b32 s%d, s%d, 15' % (sT1, sGW))
        A('s_lshl_b32 s%d, s%d, 5' % (sT1, sT1))
        A('s_add_u32 s%d, s%d, s%d' % (sT0, sT0, sT1))
        A('s_add_u32 s%d, s%d, %d' % (sT0, sT0, L.XF))
        A('s_add_u32 s%d, s%d, 14336' % (sT1, sT0))
        A('buffer_store_dwordx4 %s, v4, %s, s%d offen%s' % (v(XR, 4), WS, sT0, SC))
        A('buffer_store_dwordx4 %s, v4, %s, s%d offen%s' % (v(XR + 4, 4), WS, sT1, SC))
        A('v_lshlrev_b32 v4, 4, v1')
        A('s_cmp_lt_u32 s%d, 64' % sGW)
        A('s_cselect_b32 s%d, 0, -1' % sT0)
        for k in range(4):
            A('v_mov_b32 v%d, s%d' % (F + k, sT0))
            A('v_mov_b32 v%d, -1' % (F + 4 + k))
        A('s_lshl_b32 s%d, s%d, 10' % (sT0, sGW))
        A('s_add_u32 s%d, s%d, 0x100000' % (sT1, sT0))
        A('s_sub_u32 s%d, s%d, 64' % (sT2, sGW))
        A('s_cmp_lt_u32 s%d, 7' % sT2)
        A('s_cselect_b32 s%d, 0x%x, s%d' % (sT0, OOB, sT0))
        A('s_cmp_ge_u32 s%d, 0x%x' % (sT1, L.SENT_END))
        A('s_cselect_b32 s%d, 0x%x, s%d' % (sT1, OOB, sT1))
        A('buffer_store_dwordx4 %s, v4, %s, s%d offen%s' % (v(F, 4), WS, sT0, SC))
        A('buffer_store_dwordx4 %s, v4, %s, s%d offen%s' % (v(F + 4, 4), WS, sT1, SC))
        A('v_min_u32 v7, -2, v7')
        A('v_lshlrev_b32 v6, 2, v1')
        A('s_lshl_b32 s%d, s%d, 8' % (sT0, sGW))
        A('s_add_u32 s%d, s%d, %d' % (sT0, sT0, L.MI))
        A('s_cmp_lt_u32 s%d, 28' % sGW)
        A('s_cselect_b32 s%d, s%d, 0x%x' % (sT0, sT0, OOB))
        A('buffer_store_dword v7, v6, %s, s%d offen%s' % (WS, sT0, SC))


    A('s_cmp_eq_u32 s%d, 4' % sC)
    A('s_cbranch_scc1 P_quit')
    pi_lane(A, 4, 2, 5)
    A('v_and_b32 v5, 15, v4')
    A('v_xor_b32 v5, v5, v3')
    for k in range(8):
        A('v_xor_b32 v6, %d, v5' % (2 * k))
        A('v_lshlrev_b32 v6, 4, v6')
        A('v_lshl_add_u32 v%d, v4, 9, v6' % (RA + k))
    A('s_lshl_b32 s%d, s%d, 4' % (sT0, sMAT))
    A('s_add_u32 s%d, s%d, s%d' % (sT0, sT0, sH))
    A('s_mul_i32 s%d, s%d, 14' % (sT0, sT0))
    A('s_add_u32 s%d, s%d, s%d' % (sT0, sT0, sCT))
    A('s_mul_i32 s%d, s%d, %d' % (sOUT, sT0, L.TILE))
    A('s_mul_i32 s%d, s%d, 14336' % (sT0, sHALF))
    A('s_add_u32 s%d, s%d, s%d' % (sOUT, sOUT, sT0))
    A('s_add_u32 s%d, s%d, %d' % (sOUT, sOUT, L.WF))
    ps(A, 2)
    A('s_cmp_eq_u32 s%d, 0' % sMAT)
    A('s_cbranch_scc0 P_B')
    A('s_mov_b32 s%d, %s' % (sC2, f32(0.0625 * 1.4426950408889634)))
    for k in range(8):
        A('v_add_u32 v%d, s%d, v%d' % (DA + k, sOWN, RA + k))
    A('s_waitcnt vmcnt(5)')
    for ke in range(16):
        A('ds_read_b128 %s, v%d offset:%d' % (v(COL + 4 * ke, 4), DA + (ke & 7), (ke >> 3) * 256))
    A('s_branch P_mm')
    A.label('P_B')
    A('s_mov_b32 s%d, 1.0' % sC2)
    tr_addr(A, 4, 5)
    A('v_add_u32 v4, s%d, v4' % sOWN)
    A('s_waitcnt vmcnt(5)')
    for ke in range(16):
        for u in range(2):
            A('ds_read_b64_tr_b16 %s, v4 offset:%d' % (v(COL + 4 * ke + 2 * u, 2), ke * 1024 + u * 256))
    A.label('P_mm')
    A('s_mov_b32 s%d, s%d' % (sC2 + 1, sC2))
    A('v_lshlrev_b32 v4, 4, v1')
    A('s_mov_b32 s%d, 0' % sR)
    A('s_mov_b32 s%d, 0x%x' % (sT2, OOB))
    A('s_waitcnt lgkmcnt(0)')
    ps(A, 3)
    LA = 6

    def rd(par, ke):
        A('ds_read_b128 %s, v%d offset:%d' % (v(RW + 4 * (ke % 8), 4), RA + (ke & 7), par * 16384 + (ke >> 3) * 256))
        if par == 1 and ke >= 8:
            A('v_add_u32 v%d, 0x8000, v%d' % (RA + (ke & 7), RA + (ke & 7)))

    def epi(par):
        acc = ACC + 16 * par
        out = []
        for hf in range(2):
            for k in range(4):
                x = acc + 8 * hf + 2 * k
                out.append('v_pk_mul_f32 %s, %s, s[%d:%d]' % (v(x, 2), v(x, 2), sC2, sC2 + 1))
                out.append('v_cvt_pk_bf16_f32 v%d, v%d, v%d' % (EP + 4 * hf + k, x, x + 1))
            out.append('buffer_store_dwordx4 %s, v4, %s, s%d offen offset:%d%s' % (v(EP + 4 * hf, 4), WS, sT2, hf * 1024, SC))
        out.append('s_mov_b32 s%d, s%d' % (sT2, sOUT))
        out.append('s_add_u32 s%d, s%d, 2048' % (sOUT, sOUT))
        return out
    A('s_barrier')
    if DBG:
        A('s_memrealtime s[54:55]')
        A('s_waitcnt lgkmcnt(0)')
    for i in range(LA):
        rd(0, i)
    A.label('P_loop')
    for par in range(2):
        pend = []
        acc = v(ACC + 16 * par, 16)
        for ke in range(16):
            A('s_waitcnt lgkmcnt(%d)' % (LA - 1))
            A('%s %s, %s, %s, %s' % (MF32, acc, v(RW + 4 * (ke % 8), 4), v(COL + 4 * ke, 4), acc if ke else '0'))
            if ke + LA == 16:
                A('s_barrier')
            if ke + LA < 16:
                rd(par, ke + LA)
            else:
                rd(1 - par, ke + LA - 16)
            if ke == 2:
                pend = epi(1 - par)
            for _ in range(3):
                if pend:
                    A(pend.pop(0))
        A('s_add_u32 s%d, s%d, 1' % (sR, sR))
        if par == 0:
            A('s_cmp_eq_u32 s%d, 7' % sR)
            A('s_cbranch_scc1 P_end')
    if DBG:
        A('s_cmp_lg_u32 s%d, 4' % sR)
        A('s_cbranch_scc1 P_loop')
        A('s_memrealtime s[56:57]')
        A('s_waitcnt lgkmcnt(0)')
    A('s_branch P_loop')
    A.label('P_end')
    for x in epi(0):
        A(x)
    if DBG:
        pstamp(A, 1, sGW)
        A('s_waitcnt vmcnt(0)')
        pstamp(A, 2, sGW)
        A('v_mov_b32 v250, s48')
        A('buffer_store_dword v250, v251, s[8:11], s52 offen offset:4')
        A('v_mov_b32 v250, s54')
        A('buffer_store_dword v250, v251, s[8:11], s52 offen offset:8')
        A('v_mov_b32 v250, s56')
        A('buffer_store_dword v250, v251, s[8:11], s52 offen offset:12')
        for k in range(4):
            A('v_mov_b32 v250, s%d' % (60 + 2 * k))
            A('buffer_store_dword v250, v251, s[8:11], s52 offen offset:%d' % (16 + 4 * k))
    A('s_endpgm')
    return A


if __name__ == '__main__':
    import sys
    A = prep_kernel()
    txt = wrap.build([('prep_kernel', 256, 512, PREP_LDS)], [('prep_kernel', A, 256, 256)])
    open(sys.argv[1], 'w').write(txt)
    print(len(txt))
```

```python
import os
from asm import *
from util import *
import layout as L
import wrap

WS = 's[8:11]'
AUX = 's[4:7]'
S_ROLE, S_W, S_MODE, S_SPIN = 12, 13, 15, 25
sTASK, sT0, sT1, sT2, sT3 = 16, 17, 18, 19, 20
sWT0, sWT1, sX, sXS, sO0, sO1, sOS, sCNT, sCS, sN, sI, sRB, sWB, sDEP, sYS, sSEG, sSG = 26, 27, 28, 29, 30, 31, 32, 33, 34, 35, 36, 37, 38, 39, 40, 41, 42
V_L16, V_Z, V_SIG, V_ONE, V_RD, V_T = 2, 3, 4, 5, 6, 7
SLOT = 131072
MAIN_LDS = SLOT + 64
WSPIN = int(os.environ.get('WSPIN', 1 << 16))
N_T, N_H, N_F = 28, 56, 64
G_S, G_O = 16, 28
N_PRE = N_T + N_H + N_F
N_ALL = N_PRE + 16 * (G_S + G_O)
K_ROLE, K_QU, K_GQ = 0, 1, 2
for _t in range(704):
    assert (_t * 1490) >> 16 == _t // 44
for _t in range(112):
    assert (_t * 4682) >> 16 == _t // 14
for _t in range(56):
    assert (_t * 9363) >> 16 == _t // 7


DBG = int(os.environ.get('DBG', 0))
sCODE = 43


def tstamp(A, k):
    if not DBG:
        return
    A('s_memrealtime s[44:45]')
    A('s_lshl_b32 s46, s%d, 5' % sCODE)
    A('s_add_u32 s46, s46, %d' % (L.DBG + 0x80000 + 4 * k))
    A('s_waitcnt lgkmcnt(0)')
    A('v_mov_b32 v%d, s44' % V_T)
    A('buffer_store_dword v%d, v%d, %s, s46 offen' % (V_T, V_SIG, WS))


def wait_cnt(A, tag, s_addr, target, sleep=4):
    A.label(tag)
    A('buffer_load_dword v%d, v%d, %s, s%d offen sc1' % (V_T, V_Z, WS, s_addr))
    A('s_waitcnt vmcnt(0)')
    A('v_readfirstlane_b32 s%d, v%d' % (sT3, V_T))
    A('s_cmp_ge_u32 s%d, %d' % (sT3, target))
    A('s_cbranch_scc1 %s_ok' % tag)
    A('s_sub_u32 s%d, s%d, 1' % (S_SPIN, S_SPIN))
    A('s_cbranch_scc1 abort')
    A('s_sleep %d' % sleep)
    A('s_branch %s' % tag)
    A.label(tag + '_ok')


def check(regs, t):
    out = []
    regs = list(regs)
    out.append('v_max3_u32 v%d, v%d, v%d, v%d' % (t, regs[0], regs[1], regs[2]))
    rest = regs[3:]
    while len(rest) >= 2:
        out.append('v_max3_u32 v%d, v%d, v%d, v%d' % (t, t, rest[0], rest[1]))
        rest = rest[2:]
    if rest:
        out.append('v_max_u32 v%d, v%d, v%d' % (t, t, rest[0]))
    out.append('v_cmp_eq_u32 vcc, -1, v%d' % t)
    return out


def pop(A, s_addr, inc, dst):
    A('v_mov_b32 v%d, %s' % (V_T, inc))
    A('s_mov_b64 exec, 1')
    A('buffer_atomic_add v%d, v%d, %s, s%d offen sc0 sc1' % (V_T, V_Z, WS, s_addr))
    A('s_mov_b64 exec, -1')
    A('s_waitcnt vmcnt(0)')
    A('v_readfirstlane_b32 s%d, v%d' % (dst, V_T))


def entry(A, force_foreign=False):
    wrap.srd(A, 8, 96, L.WS_SIZE)
    if DBG:
        A('s_memrealtime s[48:49]')
    A('v_and_b32 v1, 63, v0')
    A('v_lshrrev_b32 v2, 6, v0')
    A('v_readfirstlane_b32 s%d, v2' % S_W)
    A('v_lshlrev_b32 v%d, 4, v1' % V_L16)
    A('v_mov_b32 v%d, 0' % V_Z)
    A('v_mov_b32 v%d, 1' % V_ONE)
    A('v_mov_b32 v%d, 0x%x' % (V_SIG, OOB))
    A('v_cmp_eq_u32 vcc, 0, v0')
    A('v_cndmask_b32 v%d, v%d, v%d, vcc' % (V_SIG, V_SIG, V_Z))
    A('s_mov_b32 s%d, %d' % (S_SPIN, WSPIN))
    A('s_waitcnt lgkmcnt(0)')
    A('s_cmp_lg_u32 s%d, 0' % S_W)
    A('s_cbranch_scc1 W_bcast')
    A('s_getreg_b32 s%d, hwreg(HW_REG_XCC_ID)' % sT0)
    A('s_and_b32 s%d, s%d, 7' % (sT0, sT0))
    if force_foreign == 1:
        A('s_bfe_u32 s%d, s2, 0x30003' % sT0)
    if force_foreign == 2:
        A('s_mov_b32 s%d, s%d' % (sT3, sT0))
        A('s_and_b32 s%d, s2, 7' % sT0)
    A('s_lshl_b32 s%d, s%d, 7' % (sT1, sT0))
    A('s_add_u32 s%d, s%d, %d' % (sT1, sT1, L.ctl(L.C_ROLE)))
    if force_foreign == 2:
        A('s_cmp_eq_u32 s%d, s%d' % (sT0, sT3))
        A('s_cselect_b32 s%d, 1, 0x10001' % sT3)
        pop(A, sT1, 's%d' % sT3, sT2)
    elif force_foreign:
        A('s_cmp_eq_u32 s%d, 0' % sT0)
        A('s_cselect_b32 s%d, 0x10001, 1' % sT3)
        pop(A, sT1, 's%d' % sT3, sT2)
    else:
        pop(A, sT1, '1', sT2)
    A('s_and_b32 s%d, s%d, 0xffff' % (sT2, sT2))
    A('s_cmp_ge_u32 s%d, 32' % sT2)
    A('s_cbranch_scc1 W_scan')
    A('s_lshl_b32 s%d, s%d, 5' % (sT0, sT0))
    A('s_add_u32 s%d, s%d, s%d' % (sTASK, sT0, sT2))
    A('s_branch W_pub')
    A.label('W_next')
    tstamp(A, 1)
    A('s_barrier')
    A('s_cmp_lg_u32 s%d, 0' % S_W)
    A('s_cbranch_scc1 W_bcast')
    A.label('W_scan')
    A('v_lshlrev_b32 v8, 7, v1')
    A('v_mov_b32 v9, 32')
    A('s_mov_b32 s%d, %d' % (sT1, L.ctl(L.C_ROLE)))
    A('buffer_load_dword v%d, v8, %s, s%d offen sc1' % (V_T, WS, sT1))
    A('s_waitcnt vmcnt(0)')
    A('v_and_b32 v%d, 0xffff, v%d' % (V_T, V_T))
    A('v_cmp_gt_u32 vcc, v9, v%d' % V_T)
    A('s_and_b32 s%d, vcc_lo, 0xff' % sT0)
    A('s_cbranch_scc0 W_gq')
    A('s_ff1_i32_b32 s%d, s%d' % (sT0, sT0))
    A('s_lshl_b32 s%d, s%d, 7' % (sT1, sT0))
    A('s_add_u32 s%d, s%d, %d' % (sT1, sT1, L.ctl(L.C_ROLE)))
    A('s_cmp_eq_u32 s%d, 0' % sT0)
    A('s_cselect_b32 s%d, 0x10001, 1' % sT3)
    pop(A, sT1, 's%d' % sT3, sT2)
    A('s_and_b32 s%d, s%d, 0xffff' % (sT2, sT2))
    A('s_cmp_ge_u32 s%d, 32' % sT2)
    A('s_cbranch_scc1 W_scan')
    A('s_lshl_b32 s%d, s%d, 5' % (sT0, sT0))
    A('s_add_u32 s%d, s%d, s%d' % (sTASK, sT0, sT2))
    A('s_branch W_pub')
    A.label('W_gq')
    A('s_mov_b32 s%d, %d' % (sT1, L.ctl(L.C_GQ)))
    pop(A, sT1, '1', sT2)
    A('s_add_u32 s%d, s%d, 256' % (sTASK, sT2))
    A.label('W_pub')
    A('v_mov_b32 v%d, s%d' % (V_T, sTASK))
    A('v_mov_b32 v8, %d' % SLOT)
    A('ds_write_b32 v8, v%d' % V_T)
    A('s_waitcnt lgkmcnt(0)')
    A.label('W_bcast')
    A('s_barrier')
    A('v_mov_b32 v8, %d' % SLOT)
    A('ds_read_b32 v%d, v8' % V_T)
    A('s_waitcnt lgkmcnt(0)')
    A('v_readfirstlane_b32 s%d, v%d' % (sTASK, V_T))
    if DBG:
        A('s_mov_b32 s%d, s%d' % (sCODE, sTASK))
        tstamp(A, 0)
        A('v_mov_b32 v%d, s48' % V_T)
        A('buffer_store_dword v%d, v%d, %s, s46 offen offset:28' % (V_T, V_SIG, WS))
    A('s_cmp_lt_u32 s%d, 32' % sTASK)
    A('s_cbranch_scc1 W_role')
    A('s_sub_u32 s%d, s%d, 32' % (sTASK, sTASK))
    A('s_cmp_lt_u32 s%d, 224' % sTASK)
    A('s_cbranch_scc1 T_QU')
    A('s_sub_u32 s%d, s%d, 224' % (sTASK, sTASK))
    A('s_cmp_lt_u32 s%d, %d' % (sTASK, N_T))
    A('s_cbranch_scc1 T_T')
    A('s_sub_u32 s%d, s%d, %d' % (sTASK, sTASK, N_T))
    A('s_cmp_lt_u32 s%d, %d' % (sTASK, N_H))
    A('s_cbranch_scc1 T_H')
    A('s_sub_u32 s%d, s%d, %d' % (sTASK, sTASK, N_H))
    A('s_cmp_lt_u32 s%d, %d' % (sTASK, N_F))
    A('s_cbranch_scc1 T_F')
    A('s_sub_u32 s%d, s%d, %d' % (sTASK, sTASK, N_F))
    A('s_cmp_ge_u32 s%d, %d' % (sTASK, N_ALL - N_PRE))
    A('s_cbranch_scc1 W_quit')
    A('s_mul_i32 s%d, s%d, 1490' % (sSG, sTASK))
    A('s_lshr_b32 s%d, s%d, 16' % (sSG, sSG))
    A('s_mul_i32 s%d, s%d, 44' % (sT0, sSG))
    A('s_sub_u32 s%d, s%d, s%d' % (sTASK, sTASK, sT0))
    A('s_cmp_lt_u32 s%d, %d' % (sTASK, G_S))
    A('s_cbranch_scc1 T_S')
    A('s_sub_u32 s%d, s%d, %d' % (sTASK, sTASK, G_S))
    A('s_branch T_O')
    A.label('W_quit')
    A('s_endpgm')
    A.label('W_role')
    A('s_mov_b32 s%d, s%d' % (S_ROLE, sTASK))
    A('s_cmp_lt_u32 s%d, 16' % S_ROLE)
    A('s_cbranch_scc1 roleA')
    A('s_sub_u32 s%d, s%d, 16' % (S_ROLE, S_ROLE))
    A('s_cmp_lt_u32 s%d, 14' % S_ROLE)
    A('s_cbranch_scc1 roleB')
    A('s_sub_u32 s%d, s%d, 14' % (S_ROLE, S_ROLE))
    A('s_branch roleP')
    A.label('abort')
    wrap.srd(A, 4, 88, 256)
    A('v_mov_b32 v2, 0xdead')
    A('v_mov_b32 v3, s%d' % sTASK)
    A('v_mov_b32 v0, 0')
    A('s_waitcnt lgkmcnt(0)')
    A('s_mov_b64 exec, 1')
    A('buffer_store_dwordx2 v[2:3], v0, s[4:7], 0 offen')
    A('s_waitcnt vmcnt(0)')
    A('s_endpgm')


ACC, XW, EP, YM = 64, 96, 128, 144
LA = 6


def signal(A, s_addr):
    A('buffer_atomic_add v%d, v%d, %s, s%d offen sc1' % (V_ONE, V_SIG, WS, s_addr))


def dma_x(A):
    out = []
    for k in range(7):
        pre = []
        if k == 0:
            pre = ['s_mov_b32 m0, s%d' % sWB]
        if k == 4:
            pre = ['s_add_u32 m0, s%d, 4096' % sWB, 's_add_u32 s%d, s%d, 4096' % (sT0, sX)]
        out.append(pre + ['buffer_load_dwordx4 v%d, %s, s%d offen offset:%d sc1 lds' % (V_L16, WS, sX if k < 4 else sT0, (k & 3) * 1024)])
    out[-1] += ['s_add_u32 s%d, s%d, s%d' % (sX, sX, sXS),
                's_add_u32 s%d, s%d, %d' % (sWB, sWB, L.TILE),
                's_cmp_ge_u32 s%d, %d' % (sWB, 3 * L.TILE),
                's_cselect_b32 s%d, %d, 0' % (sT0, 3 * L.TILE),
                's_sub_u32 s%d, s%d, s%d' % (sWB, sWB, sT0)]
    return out


def rd(i):
    return 'ds_read_b128 %s, v%d offset:%d' % (v(XW + 4 * (i % 8), 4), V_RD, i * 1024)


def mf_phase(A, uform, fill):
    fill = list(fill)
    for i in range(28):
        A('s_waitcnt lgkmcnt(%d)' % (min(27, i + LA - 1) - i))
        for t in range(2):
            acc = v(ACC + 16 * t, 16)
            w, x = a(112 * t + 4 * i, 4), v(XW + 4 * (i % 8), 4)
            A('%s %s, %s, %s, %s' % (MF32, acc, x if uform else w, w if uform else x, acc if i else '0'))
            if t == 0 and i + LA < 28:
                A(rd(i + LA))
            if t == 1 and fill and i % 2 == 1:
                for x in fill.pop(0):
                    A(x)
    assert not fill


def epilogue(A, kind):
    if kind == 'F':
        for t in range(2):
            for rq in range(4):
                A('buffer_store_dwordx4 %s, v%d, %s, s%d offen offset:%d sc1' % (v(ACC + 16 * t + 4 * rq, 4), V_L16, WS, (sO0, sO1)[t], rq * 1024))
    elif kind == 'Y':
        for sq in range(4):
            for t in range(2):
                for k in range(2):
                    x = ACC + 16 * t + 4 * sq + 2 * k
                    A('v_cvt_pk_bf16_f32 v%d, v%d, v%d' % (EP + 4 * sq + 2 * t + k, x, x + 1))
            A('buffer_store_dwordx4 %s, v%d, %s, s%d offen sc1' % (v(EP + 4 * sq, 4), V_L16, WS, sO0))
            A('s_add_u32 s%d, s%d, %d' % (sO0, sO0, 112 * 1024))
        return
    else:
        for t in range(2):
            for hf in range(2):
                e = EP + 8 * t + 4 * hf
                for k in range(4):
                    x = ACC + 16 * t + 8 * hf + 2 * k
                    A('v_cvt_pk_bf16_f32 v%d, v%d, v%d' % (e + k, x, x + 1))
                    if kind == 'H':
                        A('v_pk_max_i16 v%d, v%d, 0' % (e + k, e + k))
                A('buffer_store_dwordx4 %s, v%d, %s, s%d offen offset:%d sc1' % (v(e, 4), V_L16, WS, (sO0, sO1)[t], hf * 1024))
    A('s_add_u32 s%d, s%d, s%d' % (sO0, sO0, sOS))
    A('s_add_u32 s%d, s%d, s%d' % (sO1, sO1, sOS))


def engine(A, kind):
    tag = 'E' + kind
    A.label(tag)
    n = 0
    for t in range(2):
        for kb in range(28):
            if kb % 4 == 0:
                A('s_add_u32 s%d, s%d, %d' % (sT0, (sWT0, sWT1)[t], kb * 1024))
            A('buffer_load_dwordx4 %s, v%d, %s, s%d offen offset:%d' % (a(112 * t + 4 * kb, 4), V_L16, WS, sT0, (kb & 3) * 1024))
    A('s_mul_i32 s%d, s%d, 7168' % (sWB, S_W))
    A('s_add_u32 s%d, s%d, s%d' % (sX, sX, sWB))
    A('s_mov_b32 s%d, 0' % sRB)
    A('s_mov_b32 s%d, 0' % sI)
    A('s_waitcnt vmcnt(40)')
    for k in range(2):
        if kind == 'F':
            wait_cnt(A, tag + '_d%d' % k, sDEP, 7)
            A('s_add_u32 s%d, s%d, s%d' % (sDEP, sDEP, sCS))
        for g in dma_x(A):
            for x in g:
                A(x)
    A.label(tag + '_top')
    A('v_add_u32 v%d, s%d, v%d' % (V_RD, sRB, V_L16))
    A('s_waitcnt vmcnt(7)')
    A('s_barrier')
    for i in range(LA):
        A(rd(i))
    A('s_add_u32 s%d, s%d, %d' % (sRB, sRB, L.TILE))
    A('s_cmp_ge_u32 s%d, %d' % (sRB, 3 * L.TILE))
    A('s_cselect_b32 s%d, 0, s%d' % (sRB, sRB))
    A('s_cmp_lt_u32 s%d, 2' % sI)
    A('s_cbranch_scc1 %s_nosig' % tag)
    signal(A, sCNT)
    A('s_add_u32 s%d, s%d, s%d' % (sCNT, sCNT, sCS))
    if DBG:
        A('s_cmp_lg_u32 s%d, 2' % sI)
        A('s_cbranch_scc1 %s_nosig' % tag)
        tstamp(A, 4)
    A.label(tag + '_nosig')
    A('s_cmp_lt_u32 s%d, 1' % sI)
    A('s_cbranch_scc1 %s_noepi' % tag)
    epilogue(A, kind)
    A.label(tag + '_noepi')
    A('s_add_u32 s%d, s%d, 1' % (sI, sI))
    if kind == 'F':
        A('s_add_u32 s%d, s%d, 1' % (sT0, sI))
        A('s_cmp_ge_u32 s%d, s%d' % (sT0, sN))
        A('s_cbranch_scc1 %s_d2_ok' % tag)
        wait_cnt(A, tag + '_d2', sDEP, 7)
        A('s_add_u32 s%d, s%d, s%d' % (sDEP, sDEP, sCS))
    mf_phase(A, kind == 'U', dma_x(A))
    A('s_cmp_lt_u32 s%d, s%d' % (sI, sN))
    A('s_cbranch_scc1 %s_top' % tag)
    epilogue(A, kind)
    A('s_waitcnt vmcnt(0)')
    A('s_barrier')
    signal(A, sCNT)
    A('s_add_u32 s%d, s%d, s%d' % (sCNT, sCNT, sCS))
    signal(A, sCNT)
    if kind != 'U':
        A('s_branch W_next')
        return
    tstamp(A, 2)
    A('s_cmp_eq_u32 s%d, 0' % sYS)
    A('s_cbranch_scc1 W_next')
    A('s_mov_b32 s%d, s%d' % (sO0, sYS))
    A('s_mul_i32 s%d, s%d, 7168' % (sWB, S_W))
    A('s_add_u32 s%d, s%d, %d' % (sX, sWB, L.MX))
    A('v_add_u32 v8, s%d, v%d' % (sWB, V_L16))
    A('v_mov_b32 v%d, v%d' % (V_RD, V_L16))
    A('s_mov_b32 s%d, %d' % (sCNT, L.ctl(L.C_Y)))
    A('s_mov_b32 s%d, 0' % sI)
    A.label('EY_top')
    A('s_add_u32 s%d, s%d, 4096' % (sT0, sX))
    for k in range(7):
        A('buffer_load_dwordx4 %s, v%d, %s, s%d offen offset:%d sc1' % (v(YM + 4 * k, 4), V_L16, WS, sX if k < 4 else sT0, (k & 3) * 1024))
    A('s_waitcnt vmcnt(0)')
    for x in check(range(YM, YM + 28), V_T):
        A(x)
    A('s_cbranch_vccz EY_ok')
    A('s_sub_u32 s%d, s%d, 1' % (S_SPIN, S_SPIN))
    A('s_cbranch_scc1 abort')
    A('s_sleep 6')
    A('s_branch EY_top')
    A.label('EY_ok')
    tstamp(A, 3)
    for k in range(7):
        A('ds_write_b128 v8, %s offset:%d' % (v(YM + 4 * k, 4), k * 1024))
    A('s_waitcnt lgkmcnt(0)')
    A('s_barrier')
    for i in range(LA):
        A(rd(i))
    mf_phase(A, True, [])
    epilogue(A, 'Y')
    A('s_waitcnt vmcnt(0)')
    A('s_barrier')
    signal(A, sCNT)
    A('s_add_u32 s%d, s%d, 128' % (sCNT, sCNT))
    A('s_add_u32 s%d, s%d, %d' % (sX, sX, L.TILE))
    A('s_add_u32 s%d, s%d, 1' % (sI, sI))
    A('s_cmp_lt_u32 s%d, 16' % sI)
    A('s_cbranch_scc1 EY_top')
    A('s_branch W_next')


def task_QU(A):
    A.label('T_QU')
    A('s_and_b32 s%d, s%d, 3' % (sSEG, sTASK))
    A('s_lshr_b32 s%d, s%d, 3' % (sT0, sTASK))
    A('s_lshl_b32 s%d, s%d, 2' % (sT0, sT0))
    A('s_add_u32 s%d, s%d, s%d' % (sT0, sT0, S_W))
    A('s_mul_i32 s%d, s%d, 4682' % (sT1, sT0))
    A('s_lshr_b32 s%d, s%d, 16' % (sT1, sT1))
    A('s_mul_i32 s%d, s%d, 14' % (sT1, sT1))
    A('s_add_u32 s%d, s%d, s%d' % (sT1, sT1, sT0))
    A('s_mul_i32 s%d, s%d, %d' % (sWT0, sT1, L.TILE))
    A('s_lshl_b32 s%d, s%d, 11' % (sO0, sT1))
    A('s_mul_i32 s%d, s%d, %d' % (sT1, sSEG, 16 * L.TILE))
    A('s_add_u32 s%d, s%d, s%d' % (sO0, sO0, sT1))
    A('s_mul_i32 s%d, s%d, %d' % (sX, sSEG, L.TILE))
    A('s_add_u32 s%d, s%d, %d' % (sX, sX, L.XF))
    A('s_mov_b32 s%d, %d' % (sXS, 4 * L.TILE))
    A('s_mov_b32 s%d, %d' % (sOS, 64 * L.TILE))
    A('s_lshl_b32 s%d, s%d, 7' % (sCNT, sSEG))
    A('s_mov_b32 s%d, 512' % sCS)
    A('s_mov_b32 s%d, 16' % sN)
    A('s_lshl_b32 s%d, s%d, 10' % (sYS, sT0))
    A('s_add_u32 s%d, s%d, %d' % (sYS, sYS, L.YF))
    A('s_cmp_eq_u32 s%d, 3' % sSEG)
    A('s_cselect_b32 s%d, s%d, 0' % (sYS, sYS))
    A('s_bitcmp1_b32 s%d, 2' % sTASK)
    A('s_cselect_b32 s%d, %d, 0' % (sT0, 224 * L.TILE))
    A('s_cselect_b32 s%d, %d, 0' % (sT1, L.UF - L.QF))
    A('s_cselect_b32 s%d, %d, %d' % (sT2, L.ctl(L.C_U), L.ctl(L.C_Q)))
    A('s_add_u32 s%d, s%d, s%d' % (sWT0, sWT0, sT0))
    A('s_add_u32 s%d, s%d, %d' % (sWT0, sWT0, L.WF))
    A('s_add_u32 s%d, s%d, %d' % (sWT1, sWT0, 14 * L.TILE))
    A('s_add_u32 s%d, s%d, s%d' % (sO0, sO0, sT1))
    A('s_add_u32 s%d, s%d, %d' % (sO0, sO0, L.QF))
    A('s_add_u32 s%d, s%d, %d' % (sO1, sO0, 14 * 2048))
    A('s_add_u32 s%d, s%d, s%d' % (sCNT, sCNT, sT2))
    A('s_bitcmp1_b32 s%d, 2' % sTASK)
    A('s_cbranch_scc1 EU')
    A('s_branch EQ')


def task_H(A):
    A.label('T_H')
    A('s_mul_i32 s%d, s%d, 9363' % (sSEG, sTASK))
    A('s_lshr_b32 s%d, s%d, 16' % (sSEG, sSEG))
    A('s_mul_i32 s%d, s%d, 7' % (sT0, sSEG))
    A('s_sub_u32 s%d, s%d, s%d' % (sT0, sTASK, sT0))
    A('s_lshl_b32 s%d, s%d, 2' % (sT0, sT0))
    A('s_add_u32 s%d, s%d, s%d' % (sT0, sT0, S_W))
    A('s_mul_i32 s%d, s%d, %d' % (sWT0, sT0, 2 * L.TILE))
    A('s_add_u32 s%d, s%d, %d' % (sWT0, sWT0, L.WF + 448 * L.TILE))
    A('s_add_u32 s%d, s%d, %d' % (sWT1, sWT0, L.TILE))
    A('s_lshl_b32 s%d, s%d, 12' % (sO0, sT0))
    A('s_mul_i32 s%d, s%d, %d' % (sT1, sSEG, 32 * L.TILE))
    A('s_add_u32 s%d, s%d, s%d' % (sO0, sO0, sT1))
    A('s_add_u32 s%d, s%d, %d' % (sO0, sO0, L.HF))
    A('s_add_u32 s%d, s%d, 2048' % (sO1, sO0))
    A('s_mov_b32 s%d, %d' % (sOS, 4 * L.TILE))
    A('s_mul_i32 s%d, s%d, %d' % (sX, sSEG, 8 * L.TILE))
    A('s_add_u32 s%d, s%d, %d' % (sX, sX, L.XF))
    A('s_mov_b32 s%d, %d' % (sXS, L.TILE))
    A('s_lshl_b32 s%d, s%d, 10' % (sCNT, sSEG))
    A('s_add_u32 s%d, s%d, %d' % (sCNT, sCNT, L.ctl(L.C_H)))
    A('s_mov_b32 s%d, 128' % sCS)
    A('s_mov_b32 s%d, 8' % sN)
    A('s_mov_b32 s%d, %d' % (sT0, L.ctl(L.C_T)))
    wait_cnt(A, 'T_H_w', sT0, N_T)
    A('s_branch EH')


def task_F(A):
    A.label('T_F')
    A('s_lshr_b32 s%d, s%d, 3' % (sSEG, sTASK))
    A('s_and_b32 s%d, s%d, 7' % (sT0, sTASK))
    A('s_mul_i32 s%d, s%d, 7' % (sT0, sT0))
    A('s_lshl_b32 s%d, s%d, 1' % (sT1, S_W))
    A('s_add_u32 s%d, s%d, s%d' % (sT0, sT0, sT1))
    A('s_mul_i32 s%d, s%d, %d' % (sWT0, sT0, L.TILE))
    A('s_add_u32 s%d, s%d, %d' % (sWT0, sWT0, L.W2F))
    A('s_add_u32 s%d, s%d, %d' % (sWT1, sWT0, L.TILE))
    A('s_lshl_b32 s%d, s%d, 12' % (sO0, sT0))
    A('s_mul_i32 s%d, s%d, %d' % (sT1, sSEG, 8 * 56 * 4096))
    A('s_add_u32 s%d, s%d, s%d' % (sO0, sO0, sT1))
    A('s_add_u32 s%d, s%d, %d' % (sO0, sO0, L.FF))
    A('s_add_u32 s%d, s%d, 4096' % (sO1, sO0))
    A('s_cmp_eq_u32 s%d, 3' % S_W)
    A('s_cselect_b32 s%d, 0x%x, s%d' % (sO1, OOB, sO1))
    A('s_cselect_b32 s%d, s%d, s%d' % (sWT1, sWT0, sWT1))
    A('s_mov_b32 s%d, %d' % (sOS, 56 * 4096))
    A('s_bfe_u32 s%d, s%d, 0x20001' % (sT0, sTASK))
    A('s_lshl_b32 s%d, s%d, 5' % (sT1, sSEG))
    A('s_add_u32 s%d, s%d, s%d' % (sT0, sT0, sT1))
    A('s_mul_i32 s%d, s%d, %d' % (sX, sT0, L.TILE))
    A('s_add_u32 s%d, s%d, %d' % (sX, sX, L.HF))
    A('s_mov_b32 s%d, %d' % (sXS, 4 * L.TILE))
    A('s_lshl_b32 s%d, s%d, 10' % (sCNT, sSEG))
    A('s_add_u32 s%d, s%d, %d' % (sDEP, sCNT, L.ctl(L.C_H)))
    A('s_add_u32 s%d, s%d, %d' % (sCNT, sCNT, L.ctl(L.C_F)))
    A('s_mov_b32 s%d, 128' % sCS)
    A('s_mov_b32 s%d, 8' % sN)
    A('s_mov_b32 s%d, %d' % (sT0, L.ctl(L.C_T)))
    wait_cnt(A, 'T_F_w', sT0, N_T)
    A('s_branch EF')


def task_T(A):
    A.label('T_T')
    A('s_lshl_b32 s%d, s%d, 2' % (sT0, sTASK))
    A('s_add_u32 s%d, s%d, s%d' % (sT0, sT0, S_W))
    A('s_mul_i32 s%d, s%d, %d' % (sO0, sT0, L.TILE))
    A('s_add_u32 s%d, s%d, %d' % (sO0, sO0, L.WF + 448 * L.TILE))
    assert L.W2F == L.WF + 504 * L.TILE
    A('v_lshrrev_b32 v8, 2, v1')
    A('v_and_b32 v9, 3, v1')
    A('s_cmp_ge_u32 s%d, 14' % sTASK)
    A('s_cbranch_scc1 T_T2')
    wrap.srd(A, 4, 64, 448 * 1792 * 2)
    A('s_lshl_b32 s%d, s%d, 6' % (sX, sT0))
    A('s_mov_b32 s%d, 3584' % sXS)
    A('s_branch T_T3')
    A.label('T_T2')
    wrap.srd(A, 4, 72, 448 * 1792 * 2)
    A('s_sub_u32 s%d, s%d, 56' % (sT0, sT0))
    A('s_mul_i32 s%d, s%d, 4682' % (sT1, sT0))
    A('s_lshr_b32 s%d, s%d, 16' % (sT1, sT1))
    A('s_mul_i32 s%d, s%d, 14' % (sT2, sT1))
    A('s_sub_u32 s%d, s%d, s%d' % (sT0, sT0, sT2))
    A('s_lshl_b32 s%d, s%d, 6' % (sX, sT0))
    A('s_mul_i32 s%d, s%d, %d' % (sT1, sT1, 448 * 896))
    A('s_add_u32 s%d, s%d, s%d' % (sX, sX, sT1))
    A('s_mov_b32 s%d, 896' % sXS)
    A.label('T_T3')
    A('v_mul_lo_u32 v8, v8, s%d' % sXS)
    A('v_lshl_add_u32 v8, v9, 4, v8')
    A('s_lshl_b32 s%d, s%d, 4' % (sXS, sXS))
    A('s_mul_i32 s%d, s%d, %d' % (sWB, S_W, L.TILE))
    A('s_waitcnt lgkmcnt(0)')
    for n in range(28):
        A('s_add_u32 m0, s%d, %d' % (sWB, n * 1024))
        A('buffer_load_dwordx4 v8, %s, s%d offen lds' % (AUX, sX))
        A('s_add_u32 s%d, s%d, s%d' % (sX, sX, sXS))
    tr_addr(A, 9, 10)
    A('v_add_u32 v9, s%d, v9' % sWB)
    for q in range(4):
        A('s_waitcnt vmcnt(%d)' % (21 - 7 * q + 7 * q))
        for k in range(7):
            for u in range(2):
                A('ds_read_b64_tr_b16 %s, v9 offset:%d' % (v(16 + 28 * q + 4 * k + 2 * u, 2), (7 * q + k) * 1024 + u * 256))
        A('s_add_u32 s%d, s%d, 4096' % (sT0, sO0))
        for k in range(7):
            A('s_waitcnt lgkmcnt(%d)' % (12 - 2 * k))
            A('buffer_store_dwordx4 %s, v%d, %s, s%d offen offset:%d sc1' % (v(16 + 28 * q + 4 * k, 4), V_L16, WS, sO0 if k < 4 else sT0, (k & 3) * 1024))
        A('s_add_u32 s%d, s%d, 7168' % (sO0, sO0))
    A('s_waitcnt vmcnt(0)')
    A('s_barrier')
    A('s_mov_b32 s%d, %d' % (sT0, L.ctl(L.C_T)))
    signal(A, sT0)
    A('s_branch W_next')


def task_S(A):
    MXR, SX, SM, TT = 16, 48, 64, 128
    A.label('T_S')
    A('s_lshr_b32 s%d, s%d, 2' % (sI, sTASK))
    A('s_lshl_b32 s%d, s%d, 2' % (sSEG, sSG))
    A('s_add_u32 s%d, s%d, s%d' % (sSEG, sSEG, sI))
    A('s_and_b32 s%d, s%d, 3' % (sT0, sTASK))
    A('s_lshl_b32 s%d, s%d, 2' % (sT0, sT0))
    A('s_add_u32 s%d, s%d, s%d' % (sT0, sT0, S_W))
    A('s_lshl_b32 s%d, s%d, 4' % (sN, sSEG))
    A('s_add_u32 s%d, s%d, s%d' % (sN, sN, sT0))
    A('s_mul_i32 s%d, s%d, %d' % (sX, sSEG, L.TILE))
    A('s_add_u32 s%d, s%d, %d' % (sX, sX, L.XF))
    for kb in range(28):
        if kb and kb % 4 == 0:
            A('s_add_u32 s%d, s%d, 4096' % (sX, sX))
        A('buffer_load_dwordx4 %s, v%d, %s, s%d offen offset:%d' % (a(112 + 4 * kb, 4), V_L16, WS, sX, (kb & 3) * 1024))
    A('s_lshl_b32 s%d, s%d, 7' % (sCNT, sSEG))
    A('s_add_u32 s%d, s%d, %d' % (sT0, sCNT, L.ctl(L.C_Q)))
    wait_cnt(A, 'T_S_q', sT0, 28)
    A('s_mul_i32 s%d, s%d, %d' % (sX, sN, L.TILE))
    A('s_add_u32 s%d, s%d, %d' % (sX, sX, L.QF))
    for kb in range(28):
        if kb and kb % 4 == 0:
            A('s_add_u32 s%d, s%d, 4096' % (sX, sX))
        A('buffer_load_dwordx4 %s, v%d, %s, s%d offen offset:%d sc1' % (a(4 * kb, 4), V_L16, WS, sX, (kb & 3) * 1024))
    A('v_bfe_u32 v9, v1, 3, 2')
    A('v_lshlrev_b32 v8, 10, v9')
    A('v_lshrrev_b32 v9, 5, v1')
    A('v_lshl_add_u32 v8, v9, 9, v8')
    A('v_and_b32 v10, 7, v1')
    A('v_lshl_add_u32 v8, v10, 4, v8')
    A('s_mul_i32 s%d, s%d, %d' % (sX, sSG, L.TILE))
    A('s_lshl_b32 s%d, s%d, 7' % (sT0, sI))
    A('s_add_u32 s%d, s%d, s%d' % (sX, sX, sT0))
    A('s_add_u32 s%d, s%d, %d' % (sX, sX, L.MX))
    A('v_and_b32 v10, 31, v1')
    A('v_lshlrev_b32 v9, 2, v9')
    A('v_sub_u32 v10, v10, v9')
    A('v_mov_b32 v11, 0xff800000')
    for kb in range(28):
        A('s_waitcnt vmcnt(%d)' % (27 - kb))
        A('%s %s, %s, %s, %s' % (MF32, v(SX, 16), a(112 + 4 * kb, 4), a(4 * kb, 4), v(SX, 16) if kb else '0'))
    for r_ in range(16):
        A('v_cmp_le_i32 vcc, %d, v10' % (8 * (r_ >> 2) + (r_ & 3)))
        A('v_cndmask_b32 v%d, v11, v%d, vcc' % (SX + r_, SX + r_))
    mx = TT
    A('v_max3_f32 v%d, v%d, v%d, v%d' % (mx, SX, SX + 1, SX + 2))
    for k in range(3, 15, 2):
        A('v_max3_f32 v%d, v%d, v%d, v%d' % (mx, mx, SX + k, SX + k + 1))
    A('v_max_f32 v%d, v%d, v%d' % (mx, mx, SX + 15))
    A.label('T_S_m')
    A('s_mov_b32 s%d, s%d' % (sT0, sX))
    for k in range(7):
        A('buffer_load_dwordx4 %s, v8, %s, s%d offen sc1' % (v(MXR + 4 * k, 4), WS, sT0))
        if k < 6:
            A('s_add_u32 s%d, s%d, 4096' % (sT0, sT0))
    A('s_waitcnt vmcnt(0)')
    for x in check(range(MXR, MXR + 28), V_T):
        A(x)
    A('s_cbranch_vccz T_S_mok')
    A('s_sub_u32 s%d, s%d, 1' % (S_SPIN, S_SPIN))
    A('s_cbranch_scc1 abort')
    A('s_sleep 6')
    A('s_branch T_S_m')
    A.label('T_S_mok')
    tstamp(A, 2)
    for k in range(7):
        for q in range(4):
            acc = v(SM + 16 * q, 16)
            A('%s %s, %s, %s, %s' % (MF32, acc, v(MXR + 4 * k, 4), a(4 * (4 * k + q), 4), acc if k else '0'))
    A('s_lshl_b32 s%d, s%d, 11' % (sO0, sN))
    A('s_add_u32 s%d, s%d, %d' % (sO0, sO0, L.PX))
    A('s_lshr_b32 s%d, s%d, 1' % (sO1, sN))
    A('s_lshl_b32 s%d, s%d, 10' % (sO1, sO1))
    A('s_and_b32 s%d, s%d, 1' % (sT0, sN))
    A('s_lshl_b32 s%d, s%d, 3' % (sT0, sT0))
    A('s_add_u32 s%d, s%d, s%d' % (sO1, sO1, sT0))
    A('s_add_u32 s%d, s%d, %d' % (sO1, sO1, L.PM))
    A('s_add_u32 s%d, s%d, %d' % (sCNT, sCNT, L.ctl(L.C_P)))
    for k in range(2):
        A('v_pk_add_f32 %s, %s, %s' % (v(SM + 2 * k, 2), v(SM + 2 * k, 2), v(SM + 20 + 2 * k, 2)))
    for k in range(2):
        A('v_pk_add_f32 %s, %s, %s' % (v(SM + 40 + 2 * k, 2), v(SM + 40 + 2 * k, 2), v(SM + 60 + 2 * k, 2)))
    for k in range(2):
        A('v_pk_add_f32 %s, %s, %s' % (v(SM + 2 * k, 2), v(SM + 2 * k, 2), v(SM + 40 + 2 * k, 2)))
    assert SM == SX + 16
    A('v_max3_f32 v%d, v%d, v%d, v%d' % (mx, mx, SM, SM + 1))
    A('v_max3_f32 v%d, v%d, v%d, v%d' % (mx, mx, SM + 2, SM + 3))
    A('v_mov_b32 v%d, v%d' % (mx + 1, mx))
    A('v_permlane32_swap_b32 v%d, v%d' % (mx, mx + 1))
    A('v_max_f32 v%d, v%d, v%d' % (mx, mx, mx + 1))
    for k in range(10):
        x = v(SX + 2 * k, 2)
        A('v_pk_add_f32 %s, %s, %s op_sel_hi:[1,0] neg_lo:[0,1] neg_hi:[0,1]' % (x, x, v(mx, 2)))
        A('v_exp_f32 v%d, v%d' % (SX + 2 * k, SX + 2 * k))
        A('v_exp_f32 v%d, v%d' % (SX + 2 * k + 1, SX + 2 * k + 1))
    sm = TT + 2
    A('v_pk_add_f32 %s, %s, %s' % (v(sm, 2), v(SX, 2), v(SX + 2, 2)))
    for k in range(2, 10):
        A('v_pk_add_f32 %s, %s, %s' % (v(sm, 2), v(sm, 2), v(SX + 2 * k, 2)))
    A('v_add_f32 v%d, v%d, v%d' % (sm, sm, sm + 1))
    A('v_mov_b32 v%d, v%d' % (sm + 1, sm))
    A('v_permlane32_swap_b32 v%d, v%d' % (sm, sm + 1))
    A('v_add_f32 v%d, v%d, v%d' % (sm, sm, sm + 1))
    A('v_rcp_f32 v%d, v%d' % (sm, sm))
    o = TT + 4
    for k in range(10):
        x = v(SX + 2 * k, 2)
        A('v_pk_mul_f32 %s, %s, %s op_sel_hi:[1,0]' % (x, x, v(sm, 2)))
        A('v_cvt_pk_bf16_f32 v%d, v%d, v%d' % (o + k, SX + 2 * k, SX + 2 * k + 1))
        if k in (3, 7):
            A('buffer_store_dwordx4 %s, v%d, %s, s%d offen offset:%d sc1' % (v(o + k - 3, 4), V_L16, WS, sO0, (k >> 2) * 1024))
    A('buffer_store_dwordx2 %s, v%d, %s, s%d offen sc1' % (v(o + 8, 2), V_L16, WS, sO1))
    A('s_waitcnt vmcnt(0)')
    A('s_mov_b64 exec, 1')
    A('buffer_atomic_add v%d, v%d, %s, s%d offen sc1' % (V_ONE, V_Z, WS, sCNT))
    A('s_mov_b64 exec, -1')
    A('s_branch W_next')


def task_O(A):
    FP, XV, PXR, PMR, YR, AC, RR = 16, 48, 64, 96, 104, 128, 160
    A.label('T_O')
    wrap.srd(A, 4, 0, 2048 * 448 * 2)
    A('s_mul_i32 s%d, s%d, 9363' % (sI, sTASK))
    A('s_lshr_b32 s%d, s%d, 16' % (sI, sI))
    A('s_mul_i32 s%d, s%d, 7' % (sT0, sI))
    A('s_sub_u32 s%d, s%d, s%d' % (sN, sTASK, sT0))
    A('s_lshl_b32 s%d, s%d, 2' % (sSEG, sSG))
    A('s_add_u32 s%d, s%d, s%d' % (sSEG, sSEG, sI))
    A('s_lshl_b32 s%d, s%d, 7' % (sCNT, sSEG))
    A('v_and_b32 v8, 31, v1')
    A('v_mul_u32_u24 v8, 896, v8')
    A('v_lshrrev_b32 v9, 5, v1')
    A('v_lshl_add_u32 v8, v9, 4, v8')
    A('s_mul_i32 s%d, s%d, %d' % (sO0, sSEG, 32 * 896))
    A('s_lshl_b32 s%d, s%d, 7' % (sT0, sN))
    A('s_add_u32 s%d, s%d, s%d' % (sO0, sO0, sT0))
    A('s_lshl_b32 s%d, s%d, 5' % (sT0, S_W))
    A('s_add_u32 s%d, s%d, s%d' % (sO0, sO0, sT0))
    A('s_waitcnt lgkmcnt(0)')
    A('buffer_load_dwordx4 %s, v8, %s, s%d offen' % (v(XV, 4), AUX, sO0))
    A('s_add_u32 s%d, s%d, %d' % (sT0, sCNT, L.ctl(L.C_U)))
    wait_cnt(A, 'T_O_u', sT0, 28)
    wrap.srd(A, 4, 80, 2048 * 448 * 2)
    A('s_lshl_b32 s%d, s%d, 2' % (sWT0, sSEG))
    A('s_add_u32 s%d, s%d, s%d' % (sWT0, sWT0, S_W))
    A('s_mul_i32 s%d, s%d, %d' % (sX, sWT0, 4 * L.TILE))
    A('s_lshl_b32 s%d, s%d, 12' % (sT0, sN))
    A('s_add_u32 s%d, s%d, s%d' % (sX, sX, sT0))
    A('s_add_u32 s%d, s%d, %d' % (sX, sX, L.UF))
    for hh in range(4):
        for k in range(4):
            A('buffer_load_dwordx4 %s, v%d, %s, s%d offen offset:%d sc1' % (a(16 * hh + 4 * k, 4), V_L16, WS, sX, k * 1024))
        A('s_add_u32 s%d, s%d, %d' % (sX, sX, L.TILE))
    A('s_add_u32 s%d, s%d, %d' % (sT0, sCNT, L.ctl(L.C_F)))
    wait_cnt(A, 'T_O_f', sT0, 8)
    A('s_mul_i32 s%d, s%d, %d' % (sX, sSEG, 56 * 4096))
    A('s_lshl_b32 s%d, s%d, 13' % (sT0, sN))
    A('s_add_u32 s%d, s%d, s%d' % (sX, sX, sT0))
    A('s_lshl_b32 s%d, s%d, 11' % (sT0, S_W))
    A('s_add_u32 s%d, s%d, s%d' % (sX, sX, sT0))
    A('s_add_u32 s%d, s%d, %d' % (sX, sX, L.FF))
    for fq in range(4):
        for k in range(2):
            A('buffer_load_dwordx4 %s, v%d, %s, s%d offen offset:%d sc1' % (v(FP + 8 * fq + 4 * k, 4), V_L16, WS, sX, k * 1024))
        A('s_add_u32 s%d, s%d, %d' % (sX, sX, 14 * 4096))
    A('s_lshl_b32 s%d, s%d, 13' % (sT0, S_W))
    A('v_add_u32 v9, s%d, v%d' % (sT0, V_L16))
    A('s_lshl_b32 s%d, s%d, 11' % (sT0, S_W))
    A('v_add_u32 v10, s%d, v%d' % (sT0, V_L16))
    A('s_waitcnt vmcnt(0)')
    for k in range(4):
        A('v_pk_add_f32 %s, %s, %s' % (v(FP + 2 * k, 2), v(FP + 2 * k, 2), v(FP + 8 + 2 * k, 2)))
        A('v_pk_add_f32 %s, %s, %s' % (v(FP + 16 + 2 * k, 2), v(FP + 16 + 2 * k, 2), v(FP + 24 + 2 * k, 2)))
        A('v_pk_add_f32 %s, %s, %s' % (v(FP + 2 * k, 2), v(FP + 2 * k, 2), v(FP + 16 + 2 * k, 2)))
        A('v_cvt_pk_bf16_f32 v%d, v%d, v%d' % (FP + 8 + k, FP + 2 * k, FP + 2 * k + 1))
        A('v_lshlrev_b32 v%d, 16, v%d' % (FP + 2 * k, FP + 8 + k))
        A('v_and_b32 v%d, 0xffff0000, v%d' % (FP + 2 * k + 1, FP + 8 + k))
        A('v_lshlrev_b32 v%d, 16, v%d' % (XV + 4 + 2 * k, XV + k))
        A('v_and_b32 v%d, 0xffff0000, v%d' % (XV + 5 + 2 * k, XV + k))
    A('s_lshl_b32 s%d, s%d, 13' % (sX, sWT0))
    A('s_add_u32 s%d, s%d, %d' % (sX, sX, L.PX))
    A('s_add_u32 s%d, s%d, 4096' % (sXS, sX))
    A('s_lshl_b32 s%d, s%d, 11' % (sO1, sWT0))
    A('s_add_u32 s%d, s%d, %d' % (sO1, sO1, L.PM))
    A('s_mul_i32 s%d, s%d, %d' % (sYS, sWT0, 28 * 1024))
    A('s_lshl_b32 s%d, s%d, 11' % (sT0, sN))
    A('s_add_u32 s%d, s%d, s%d' % (sYS, sYS, sT0))
    A('s_add_u32 s%d, s%d, %d' % (sYS, sYS, L.YF))
    A('s_add_u32 s%d, s%d, %d' % (sOS, sYS, 14 * 1024))
    A('s_add_u32 s%d, s%d, %d' % (sT0, sCNT, L.ctl(L.C_P)))
    wait_cnt(A, 'T_O_p', sT0, 16)
    tstamp(A, 2)
    for k in range(8):
        A('buffer_load_dwordx4 %s, v%d, %s, s%d offen offset:%d sc1' % (v(PXR + 4 * k, 4), V_L16, WS, sX if k < 4 else sXS, (k & 3) * 1024))
    for k in range(2):
        A('buffer_load_dwordx4 %s, v%d, %s, s%d offen offset:%d sc1' % (v(PMR + 4 * k, 4), V_L16, WS, sO1, k * 1024))
    for k in range(8):
        hh, tb = k >> 1, k & 1
        A('s_waitcnt vmcnt(%d)' % (9 - k))
        for c in range(2):
            acc = v(AC + 16 * c, 16)
            A('%s %s, %s, %s, %s' % (MF32, acc, a(16 * hh + 8 * c + 4 * tb, 4), v(PXR + 4 * k, 4), acc if k else '0'))
    A('s_lshl_b32 s%d, s%d, 7' % (sT0, sSG))
    A('s_add_u32 s%d, s%d, %d' % (sT0, sT0, L.ctl(L.C_Y)))
    wait_cnt(A, 'T_O_y', sT0, 28)
    tstamp(A, 3)
    for pp in range(2):
        for c in range(2):
            A('buffer_load_dwordx4 %s, v%d, %s, s%d offen offset:%d sc1' % (v(YR + 8 * pp + 4 * c, 4), V_L16, WS, (sYS, sOS)[pp], c * 1024))
    for pp in range(2):
        for c in range(2):
            A('s_waitcnt vmcnt(%d)' % (3 - 2 * pp - c))
            acc = v(AC + 16 * c, 16)
            A('%s %s, %s, %s, %s' % (MF32, acc, v(YR + 8 * pp + 4 * c, 4), v(PMR + 4 * pp, 4), acc))
    for k in range(8):
        A('ds_write_b128 v9, %s offset:%d' % (v(AC + 4 * k, 4), k * 1024))
    A('s_waitcnt lgkmcnt(0)')
    A('s_barrier')
    for src in range(4):
        for k in range(2):
            A('ds_read_b128 %s, v10 offset:%d' % (v(RR + 8 * src + 4 * k, 4), src * 8192 + k * 1024))
    A('s_waitcnt lgkmcnt(0)')
    for k in range(4):
        x = RR + 2 * k
        A('v_pk_add_f32 %s, %s, %s' % (v(x, 2), v(x, 2), v(x + 8, 2)))
        A('v_pk_add_f32 %s, %s, %s' % (v(x + 16, 2), v(x + 16, 2), v(x + 24, 2)))
        A('v_pk_add_f32 %s, %s, %s' % (v(x, 2), v(x, 2), v(x + 16, 2)))
        for add in (XV + 4 + 2 * k, FP + 2 * k):
            A('v_cvt_pk_bf16_f32 v%d, v%d, v%d' % (x + 8, x, x + 1))
            A('v_lshlrev_b32 v%d, 16, v%d' % (x, x + 8))
            A('v_and_b32 v%d, 0xffff0000, v%d' % (x + 1, x + 8))
            A('v_pk_add_f32 %s, %s, %s' % (v(x, 2), v(x, 2), v(add, 2)))
        A('v_cvt_pk_bf16_f32 v%d, v%d, v%d' % (XV + k, x, x + 1))
    A('buffer_store_dwordx4 %s, v8, %s, s%d offen' % (v(XV, 4), AUX, sO0))
    A('s_branch W_next')


def workers(A):
    task_QU(A)
    task_H(A)
    task_F(A)
    task_T(A)
    task_S(A)
    task_O(A)
    for k in 'QUHF':
        engine(A, k)
```

```python
import os, struct
from asm import *
from util import *
import layout as L
import wrap
from work import *

RO, CO = 's[52:55]', 's[56:59]'
WB = 448 * 4096 * 2
PORD = int(os.environ.get('PORD', 0))
PX = os.environ.get('PX', '')
PTCH = int(os.environ.get('PTCH', 1))
PIL = int(os.environ.get('PIL', 1))
PDEP = int(os.environ.get('PDEP', 2))
for _t in range(224):
    assert (_t * 9363) >> 16 == _t // 7


def f32(x):
    return '0x%08x' % struct.unpack('<I', struct.pack('<f', x))[0]


def ps(A, k):
    if DBG:
        A('s_memrealtime s[%d:%d]' % (76 + 2 * k, 77 + 2 * k))


def pflush(A, n):
    if not DBG:
        return
    A('s_lshl_b32 s46, s2, 2')
    A('s_add_u32 s46, s46, s%d' % S_W)
    A('s_lshl_b32 s46, s46, 6')
    A('s_add_u32 s46, s46, %d' % (L.DBG + 0xc0000))
    A('s_waitcnt lgkmcnt(0)')
    A('v_mov_b32 v250, s48')
    A('buffer_store_dword v250, v%d, %s, s46 offen' % (V_Z, WS))
    for k in range(n):
        A('v_mov_b32 v250, s%d' % (76 + 2 * k))
        A('buffer_store_dword v250, v%d, %s, s46 offen offset:%d' % (V_Z, WS, 4 + 4 * k))


def entry(A, ff=0):
    if DBG:
        A('s_memrealtime s[48:49]')
    A('s_cmp_ge_u32 s2, 256')
    A('s_cbranch_scc1 W_quit')
    wrap.srd(A, 8, 96, L.WS_SIZE)
    wrap.srd(A, 4, 88, 256)
    A('v_and_b32 v1, 63, v0')
    A('v_lshrrev_b32 v2, 6, v0')
    A('v_readfirstlane_b32 s%d, v2' % S_W)
    A('v_lshlrev_b32 v%d, 4, v1' % V_L16)
    A('v_mov_b32 v%d, 0' % V_Z)
    A('v_mov_b32 v%d, 1' % V_ONE)
    A('v_mov_b32 v%d, 0x%x' % (V_SIG, OOB))
    A('v_cmp_eq_u32 vcc, 0, v0')
    A('v_cndmask_b32 v%d, v%d, v%d, vcc' % (V_SIG, V_SIG, V_Z))
    A('s_mov_b32 s%d, %d' % (S_SPIN, WSPIN))
    if ff:
        A('s_bfe_u32 s%d, s2, 0x30003' % sSG)
        A('s_and_b32 s%d, s2, 7' % sTASK)
        A('s_lshr_b32 s%d, s2, 6' % sT0)
        A('s_lshl_b32 s%d, s%d, 3' % (sT0, sT0))
        A('s_add_u32 s%d, s%d, s%d' % (sTASK, sTASK, sT0))
    else:
        A('s_and_b32 s%d, s2, 7' % sSG)
        A('s_lshr_b32 s%d, s2, 3' % sTASK)
    A('s_cmp_eq_u32 s%d, 0' % sSG)
    A('s_cbranch_scc1 Z_stage0')
    prep_job(A)
    stage0(A)


def prep_job(A):
    sPAIR, sSUB, sROW, sOUT, sP, sM0, sFL, sDW, sC2 = 26, 27, 28, 29, 30, 31, 32, 33, 34
    DA, RA, COL, ACC, RW, EP, VD = 16, 24, 64, 128, 160, 192, 32
    A('s_sub_u32 s%d, s%d, 1' % (sT0, sSG))
    A('s_lshl_b32 s%d, s%d, 5' % (sT0, sT0))
    A('s_add_u32 s%d, s%d, s%d' % (sTASK, sTASK, sT0))
    A('s_mul_i32 s%d, s%d, 9363' % (sPAIR, sTASK))
    A('s_lshr_b32 s%d, s%d, 16' % (sPAIR, sPAIR))
    A('s_mul_i32 s%d, s%d, 7' % (sT0, sPAIR))
    A('s_sub_u32 s%d, s%d, s%d' % (sSUB, sTASK, sT0))
    if PORD == 0:
        A('s_lshr_b32 s%d, s%d, 4' % (sT0, sPAIR))
        A('s_xor_b32 s%d, s%d, 1' % (sT0, sT0))
        A('s_and_b32 s%d, s%d, 15' % (sPAIR, sPAIR))
    else:
        A('s_bfe_u32 s%d, s%d, 0x10002' % (sT0, sPAIR))
        A('s_xor_b32 s%d, s%d, 1' % (sT0, sT0))
        A('s_lshr_b32 s%d, s%d, 3' % (sT1, sPAIR))
        A('s_lshl_b32 s%d, s%d, 2' % (sT1, sT1))
        A('s_and_b32 s%d, s%d, 3' % (sPAIR, sPAIR))
        A('s_add_u32 s%d, s%d, s%d' % (sPAIR, sPAIR, sT1))
    A('s_lshl_b32 s%d, s%d, 1' % (sPAIR, sPAIR))
    A('s_add_u32 s%d, s%d, s%d' % (sPAIR, sPAIR, sT0))
    A('s_bitcmp1_b32 s%d, 0' % sPAIR)
    A('s_cbranch_scc1 Z_srdB')
    wrap.srd(A, 52, 16, WB)
    wrap.srd(A, 56, 24, WB)
    A('s_branch Z_srd')
    A.label('Z_srdB')
    wrap.srd(A, 52, 32, WB)
    wrap.srd(A, 56, 40, WB)
    A.label('Z_srd')
    A('s_lshl_b32 s%d, s%d, 7' % (sFL, sPAIR))
    A('s_lshl_b32 s%d, s%d, 4' % (sT0, sSUB))
    A('s_add_u32 s%d, s%d, s%d' % (sFL, sFL, sT0))
    A('s_add_u32 s%d, s%d, %d' % (sFL, sFL, L.FW))
    A('v_and_b32 v8, 31, v1')
    A('v_lshrrev_b32 v9, 5, v1')
    A('v_xor_b32 v10, v9, v8')
    for k in range(8):
        A('v_xor_b32 v11, %d, v10' % (2 * k))
        A('v_lshlrev_b32 v11, 4, v11')
        A('v_lshl_add_u32 v11, v9, 13, v11')
        A('v_add_u32 v%d, %d, v11' % (DA + k, k * 16384 - (k & 3) * 1024))
    A('s_lshr_b32 s%d, s%d, 1' % (sT1, sPAIR))
    A('s_lshl_b32 s%d, s%d, 9' % (sROW, sT1))
    A('s_lshl_b32 s%d, s%d, 17' % (sT0, S_W))
    A('s_add_u32 s%d, s%d, s%d' % (sROW, sROW, sT0))
    A('s_lshl_b32 s%d, s%d, 13' % (sM0, S_W))
    A('s_waitcnt lgkmcnt(0)')
    ps(A, 0)
    if PTCH:
        A('v_lshrrev_b32 v10, 2, v1')
        A('v_and_b32 v11, 3, v1')
        A('v_lshlrev_b32 v11, 7, v11')
        A('v_lshl_add_u32 v10, v10, 13, v11')
        A('s_lshl_b32 s%d, s%d, 19' % (sT0, sSUB))
        A('s_add_u32 s%d, s%d, s%d' % (sT0, sT0, sROW))
        A('buffer_load_dword v15, v10, %s, s%d offen' % (RO, sT0))
        if PTCH == 2:
            A('buffer_load_dword v15, v10, %s, s%d offen offset:64' % (RO, sT0))

    def dma(srd, soff, mbase):
        for k in range(8):
            if k % 4 == 0:
                A('s_add_u32 m0, s%d, %d' % (sM0, mbase + k * 1024))
            A('buffer_load_dwordx4 v%d, %s, s%d offen offset:%d lds' % (DA + k, srd, soff, (k & 3) * 1024))

    def rows():
        dma(RO, sROW, 0)
        A('s_add_u32 s%d, s%d, %d' % (sROW, sROW, 0 if PX == 'same' else 64 * 8192))
        A('s_add_u32 s%d, s%d, 0x8000' % (sM0, sM0))
        A('s_and_b32 s%d, s%d, 0x1ffff' % (sM0, sM0))
    A('s_bitcmp1_b32 s%d, 0' % sPAIR)
    A('s_cbranch_scc1 Z_cB')
    A('s_lshl_b32 s%d, s%d, 19' % (sT0, sSUB))
    A('s_add_u32 s%d, s%d, s%d' % (sT0, sT0, sROW))
    dma(CO, sT0, 0x20000)
    A('s_mov_b32 s%d, %s' % (sC2, f32(0.0625 * 1.4426950408889634)))
    A('s_branch Z_c')
    A.label('Z_cB')
    A('v_lshrrev_b32 v10, 2, v1')
    A('v_mul_u32_u24 v10, 896, v10')
    A('v_and_b32 v11, 3, v1')
    A('v_lshl_add_u32 v10, v11, 4, v10')
    A('s_mul_i32 s%d, s%d, %d' % (sT0, sT1, 256 * 896))
    A('s_lshl_b32 s%d, s%d, 7' % (sT2, sSUB))
    A('s_add_u32 s%d, s%d, s%d' % (sT0, sT0, sT2))
    A('s_lshr_b32 s%d, s%d, 1' % (sT2, S_W))
    A('s_lshl_b32 s%d, s%d, 6' % (sT2, sT2))
    A('s_add_u32 s%d, s%d, s%d' % (sT0, sT0, sT2))
    A('s_and_b32 s%d, s%d, 1' % (sT2, S_W))
    A('s_mul_i32 s%d, s%d, %d' % (sT2, sT2, 128 * 896))
    A('s_add_u32 s%d, s%d, s%d' % (sT0, sT0, sT2))
    for k in range(8):
        A('s_add_u32 m0, s%d, %d' % (sM0, 0x20000 + k * 1024))
        A('buffer_load_dwordx4 v10, %s, s%d offen lds' % (CO, sT0))
        A('s_add_u32 s%d, s%d, %d' % (sT0, sT0, 16 * 896))
    A('s_mov_b32 s%d, 1.0' % sC2)
    A.label('Z_c')
    A('v_lshlrev_b32 v%d, 2, v0' % VD)
    for i in range(PDEP):
        rows()
        if i == 0:
            A('buffer_load_dword v%d, v%d, %s, 0 offen sc1' % (VD + 1, VD, AUX))
    ps(A, 1)
    A('s_mov_b32 s%d, s%d' % (sC2 + 1, sC2))
    pi_lane(A, 10, 8, 11)
    A('v_and_b32 v11, 15, v10')
    A('v_xor_b32 v11, v11, v9')
    A('s_and_b32 s%d, s%d, 1' % (sT2, S_W))
    A('s_lshl_b32 s%d, s%d, 14' % (sT0, sT2))
    for k in range(8):
        A('v_xor_b32 v12, %d, v11' % (2 * k))
        A('v_lshlrev_b32 v12, 4, v12')
        A('v_lshl_add_u32 v12, v10, 9, v12')
        A('v_add_u32 v%d, s%d, v12' % (RA + k, sT0))
    A('s_and_b32 s%d, s%d, 1' % (sT0, sPAIR))
    A('s_lshl_b32 s%d, s%d, 4' % (sT0, sT0))
    A('s_add_u32 s%d, s%d, s%d' % (sT0, sT0, sT1))
    A('s_mul_i32 s%d, s%d, 7' % (sT0, sT0))
    A('s_add_u32 s%d, s%d, s%d' % (sT0, sT0, sSUB))
    A('s_lshl_b32 s%d, s%d, 1' % (sT0, sT0))
    A('s_lshr_b32 s%d, s%d, 1' % (sT3, S_W))
    A('s_add_u32 s%d, s%d, s%d' % (sT0, sT0, sT3))
    A('s_mul_i32 s%d, s%d, %d' % (sOUT, sT0, L.TILE))
    A('s_lshl_b32 s%d, s%d, 11' % (sT0, sT2))
    A('s_add_u32 s%d, s%d, s%d' % (sOUT, sOUT, sT0))
    A('s_add_u32 s%d, s%d, %d' % (sOUT, sOUT, L.WF))
    if PX == 'nost':
        A('s_mov_b32 s%d, 0x%x' % (sOUT, OOB))
    A('s_lshl_b32 s%d, s%d, 2' % (sT0, S_W))
    A('s_add_u32 s%d, s%d, s%d' % (sFL, sFL, sT0))
    A('s_sub_u32 s%d, s%d, s%d' % (sT3, sT3, sT2))
    A('s_lshl_b32 s%d, s%d, 14' % (sT3, sT3))
    A('s_add_u32 s%d, s%d, 0x20000' % (sT3, sT3))
    for k in range(8):
        A('v_add_u32 v%d, s%d, v%d' % (RW + k, sT3, RA + k))
    tr_addr(A, 12, 13)
    A('s_lshr_b32 s%d, s%d, 1' % (sT3, S_W))
    A('s_lshl_b32 s%d, s%d, 14' % (sT3, sT3))
    A('s_add_u32 s%d, s%d, 0x20000' % (sT3, sT3))
    A('v_add_u32 v12, s%d, v12' % sT3)
    A('s_and_b32 s%d, s%d, 1' % (sT0, sSG))
    A('s_lshl_b32 s%d, s%d, 5' % (sT0, sT0))
    A('s_add_u32 s%d, s%d, s%d' % (sT0, sT0, sSG))
    A('s_lshl_b32 s%d, s%d, 2' % (sDW, sT0))
    A('v_mov_b32 v13, 0x%x' % OOB)
    A('v_cmp_eq_u32 vcc, 0, v1')
    A('v_cndmask_b32 v13, v13, v%d, vcc' % V_Z)
    A('s_mov_b32 s%d, 0' % sP)
    A('s_waitcnt vmcnt(%d)' % (8 * PDEP - 8))
    A('s_cmp_lg_u32 s%d, 0' % S_W)
    A('s_cbranch_scc1 Z_z_ok')
    wait_start(A, 'Z_z', VD, VD + 1, VD + 2, d0=False, first=True)
    A('s_barrier')
    ps(A, 2)
    A('s_bitcmp1_b32 s%d, 0' % sPAIR)
    A('s_cbranch_scc1 Z_rB')
    for ke in range(16):
        A('ds_read_b128 %s, v%d offset:%d' % (v(COL + 4 * ke, 4), RW + (ke & 7), (ke >> 3) * 256))
    A('s_branch Z_go')
    A.label('Z_rB')
    for ke in range(16):
        for u in range(2):
            A('ds_read_b64_tr_b16 %s, v12 offset:%d' % (v(COL + 4 * ke + 2 * u, 2), ke * 1024 + u * 256))
    A.label('Z_go')
    A('s_waitcnt lgkmcnt(0)')
    A('s_branch Z_in')
    A.label('Z_top')
    A('s_waitcnt vmcnt(%d)' % (11 if PDEP == 2 else 19))
    A('s_barrier')
    A.label('Z_in')
    LA = 6

    def rd(ke):
        A('ds_read_b128 %s, v%d offset:%d' % (v(RW + 4 * (ke % 8), 4), RA + (ke & 7), (ke >> 3) * 256))
        if ke >= 8:
            A('v_add_u32 v%d, 0x8000, v%d' % (RA + (ke & 7), RA + (ke & 7)))
            A('v_and_b32 v%d, 0x1ffff, v%d' % (RA + (ke & 7), RA + (ke & 7)))
    for i in range(LA):
        rd(i)
    A('s_sub_u32 s%d, s%d, %d' % (sT0, sP, PDEP - 1))
    A('s_max_i32 s%d, s%d, 0' % (sT0, sT0))
    A('v_mov_b32 v14, s%d' % sT0)
    A('buffer_store_dword v14, v13, %s, s%d offen sc1' % (WS, sFL))
    A('s_cmp_ge_u32 s%d, %d' % (sP, 7 - PDEP))
    A('s_cselect_b32 s%d, 0x%x, s%d' % (sROW, OOB, sROW))
    if not PIL:
        rows()
    acc = v(ACC, 16)
    for ke in range(16):
        A('s_waitcnt lgkmcnt(%d)' % (min(15, ke + LA - 1) - ke))
        A('%s %s, %s, %s, %s' % (MF32, acc, v(RW + 4 * (ke % 8), 4), v(COL + 4 * ke, 4), acc if ke else '0'))
        if ke + LA < 16:
            rd(ke + LA)
        if PIL and ke % 2 == 0:
            k = ke // 2
            if k % 4 == 0:
                A('s_add_u32 m0, s%d, %d' % (sM0, k * 1024))
            A('buffer_load_dwordx4 v%d, %s, s%d offen offset:%d lds' % (DA + k, RO, sROW, (k & 3) * 1024))
    if PIL:
        A('s_add_u32 s%d, s%d, %d' % (sROW, sROW, 64 * 8192))
        A('s_add_u32 s%d, s%d, 0x8000' % (sM0, sM0))
        A('s_and_b32 s%d, s%d, 0x1ffff' % (sM0, sM0))
    A('s_add_u32 s%d, s%d, 1' % (sP, sP))
    for hf in range(2):
        for k in range(4):
            x = ACC + 8 * hf + 2 * k
            A('v_pk_mul_f32 %s, %s, s[%d:%d]' % (v(x, 2), v(x, 2), sC2, sC2 + 1))
            A('v_cvt_pk_bf16_f32 v%d, v%d, v%d' % (EP + 4 * hf + k, x, x + 1))
        A('buffer_store_dwordx4 %s, v%d, %s, s%d offen offset:%d%s' % (v(EP + 4 * hf, 4), V_L16, WS, sOUT, hf * 1024, '' if PX == 'plain' else ' sc1'))
    A('s_add_u32 s%d, s%d, 4096' % (sOUT, sOUT))
    if DBG:
        A('s_cmp_lg_u32 s%d, 2' % sP)
        A('s_cbranch_scc1 Z_nost')
        ps(A, 3)
        A('s_waitcnt lgkmcnt(0)')
        A.label('Z_nost')
    A('s_cmp_lt_u32 s%d, 7' % sP)
    A('s_cbranch_scc1 Z_top')
    ps(A, 4)
    A('v_mov_b32 v14, 7')
    A('buffer_load_dword v%d, v%d, %s, 0 offen sc1' % (VD + 1, VD, AUX))
    A('s_waitcnt vmcnt(1)')
    A('buffer_store_dword v14, v13, %s, s%d offen sc1' % (WS, sFL))
    A('s_cmp_lg_u32 s%d, 0' % S_W)
    A('s_cbranch_scc1 Z_d_ok')
    A('s_waitcnt vmcnt(1)')
    wait_start(A, 'Z_d', VD, VD + 1, VD + 2, d1=False, first=True)
    ps(A, 5)
    pflush(A, 6)
    if DBG:
        A('s_add_u32 s%d, s%d, 32' % (sCODE, sTASK))
        tstamp(A, 0)
        A('v_mov_b32 v%d, s48' % V_T)
        A('buffer_store_dword v%d, v%d, %s, s46 offen offset:28' % (V_T, V_SIG, WS))
    A('s_cmp_lt_u32 s%d, 5' % sSG)
    A('s_cbranch_scc1 Z_nofill')
    A('s_lshl_b32 s%d, s%d, 2' % (sT0, sTASK))
    A('s_add_u32 s%d, s%d, s%d' % (sT0, sT0, S_W))
    A('s_sub_u32 s%d, s%d, %d' % (sT0, sT0, 512 - 16))
    A('s_lshl_b32 s%d, s%d, 12' % (sT0, sT0))
    A('s_cmp_lt_u32 s%d, %d' % (sT0, 72 * 1024))
    A('s_cselect_b32 s%d, 0x%x, s%d' % (sT0, OOB, sT0))
    for k in range(4):
        A('v_mov_b32 v%d, -1' % (ACC + k))
    for k in range(4):
        A('buffer_store_dwordx4 %s, v%d, %s, s%d offen offset:%d sc1' % (v(ACC, 4), V_L16, WS, sT0, k * 1024))
    A('s_waitcnt vmcnt(0)')
    A('s_barrier')
    A('buffer_atomic_add v%d, v%d, %s, s%d offen offset:64 sc1' % (V_ONE, V_SIG, AUX, sDW))
    A('s_branch T_QU')
    A.label('Z_nofill')
    A('s_barrier')
    A('s_branch T_QU')


def red8(A, x, t):
    A('v_add_f32_dpp v%d, v%d, v%d row_ror:8 row_mask:0xf bank_mask:0xf' % (x, x, x))
    for sw in ('v_permlane16_swap_b32', 'v_permlane32_swap_b32'):
        A('v_mov_b32 v%d, v%d' % (t, x))
        A('%s v%d, v%d' % (sw, x, t))
        A('v_add_f32 v%d, v%d, v%d' % (x, x, t))


def stage0(A):
    sGW, sXO, sIT, sFI = 26, 27, 28, 29
    XR, XR1, F, T, O = 16, 44, 72, 128, 144
    A.label('Z_stage0')
    wrap.srd(A, 52, 0, 2048 * 448 * 2)
    wrap.srd(A, 56, 8, 8 * 448 * 2)
    A('s_mov_b32 s%d, s%d' % (S_ROLE, sTASK))
    A('s_lshl_b32 s%d, s%d, 2' % (sGW, sTASK))
    A('s_add_u32 s%d, s%d, s%d' % (sGW, sGW, S_W))
    A('v_and_b32 v8, 7, v1')
    A('v_lshrrev_b32 v9, 3, v1')
    A('v_mul_u32_u24 v10, 896, v8')
    A('v_lshl_add_u32 v10, v9, 4, v10')
    A('s_mul_i32 s%d, s%d, %d' % (sT0, sGW, 16 * 896))
    A('s_add_u32 s%d, s%d, %d' % (sT1, sT0, 8 * 896))
    A('v_bfe_u32 v11, v1, 2, 3')
    A('v_mul_u32_u24 v11, 896, v11')
    A('v_and_b32 v12, 3, v1')
    A('v_lshl_add_u32 v11, v12, 3, v11')
    A('v_lshrrev_b32 v12, 5, v1')
    A('v_lshl_add_u32 v11, v12, 2, v11')
    A('s_lshl_b32 s%d, s%d, 5' % (sT2, sGW))
    A('s_cmp_lt_u32 s%d, 28' % sGW)
    A('s_cselect_b32 s%d, s%d, 0x%x' % (sT2, sT2, OOB))
    A('s_waitcnt lgkmcnt(0)')
    ps(A, 0)
    for k in range(4):
        A('v_mov_b32 v%d, 0' % (T + k))
    A('s_cmp_eq_u32 s%d, 127' % sGW)
    A('s_cselect_b32 s%d, 0, 0x%x' % (sIT, OOB))
    A('s_add_u32 s%d, s%d, %d' % (sFI, sIT, L.FW))
    V = VM(A)
    for k in range(4):
        V('buffer_store_dwordx4 %s, v%d, %s, s%d offen offset:%d sc1' % (v(T, 4), V_L16, WS, sFI, k * 1024), 'z')
    for it in range(2):
        for k in range(7):
            V('buffer_load_dwordx4 %s, v10, %s, s%d offen offset:%d' % (v((XR, XR1)[it] + 4 * k, 4), RO, (sT0, sT1)[it], k * 128), 'x%d' % it)
    V('buffer_load_dword v13, v11, %s, s%d offen' % (CO, sT2), 'x1')
    A('v_mov_b32 v12, 32')
    V.wait('z')
    V('buffer_store_dword v12, v%d, %s, s%d offen offset:%d sc1' % (V_Z, AUX, sIT, 4 * L.DZ))
    assert L.SENT_END == 1600 * 1024 and L.MI == 65536
    A('s_cmp_lt_u32 s%d, 64' % sGW)
    A('s_cselect_b32 s%d, 0, -1' % sT0)
    for k in range(4):
        A('v_mov_b32 v%d, s%d' % (T + k, sT0))
    A('s_lshl_b32 s%d, s%d, 10' % (sFI, sGW))
    A('s_cmp_lt_u32 s%d, 64' % sGW)
    A('s_cselect_b32 s%d, s%d, 0x%x' % (sT1, sFI, OOB))
    A('s_cmp_eq_u32 s%d, 71' % sGW)
    A('s_cselect_b32 s%d, s%d, s%d' % (sT1, sFI, sT1))
    V('buffer_store_dwordx4 %s, v%d, %s, s%d offen sc1' % (v(T, 4), V_L16, WS, sT1))
    A('v_lshlrev_b32 v10, 9, v9')
    A('v_lshl_add_u32 v10, v8, 4, v10')
    A('s_lshr_b32 s%d, s%d, 1' % (sXO, sGW))
    A('s_mul_i32 s%d, s%d, %d' % (sXO, sXO, L.TILE))
    A('s_and_b32 s%d, s%d, 1' % (sT0, sGW))
    A('s_lshl_b32 s%d, s%d, 8' % (sT0, sT0))
    A('s_add_u32 s%d, s%d, s%d' % (sXO, sXO, sT0))
    A('s_add_u32 s%d, s%d, %d' % (sXO, sXO, L.XF))
    A('s_mov_b32 s%d, 0' % sIT)
    V.wait('x0')
    ps(A, 1)
    A.label('Z_ln')
    T2 = T + 8
    for k in range(28):
        A('v_lshlrev_b32 v%d, 16, v%d' % (F + 2 * k, XR + k))
        A('v_and_b32 v%d, 0xffff0000, v%d' % (F + 2 * k + 1, XR + k))
        if k == 1:
            A('v_pk_add_f32 %s, %s, %s' % (v(T2, 2), v(F, 2), v(F + 2, 2)))
        elif k == 3:
            A('v_pk_add_f32 %s, %s, %s' % (v(T2 + 2, 2), v(F + 4, 2), v(F + 6, 2)))
        elif k > 3:
            x = v(T2 + 2 * (k & 1), 2)
            A('v_pk_add_f32 %s, %s, %s' % (x, x, v(F + 2 * k, 2)))
    A('v_pk_add_f32 %s, %s, %s' % (v(T2, 2), v(T2, 2), v(T2 + 2, 2)))
    A('v_add_f32 v%d, v%d, v%d' % (T2, T2, T2 + 1))
    red8(A, T2, T2 + 1)
    A('v_mul_f32 v%d, %s, v%d' % (T2, f32(1.0 / 448), T2))
    q = T2 + 2
    for k in range(28):
        d = O + 2 * (k & 3)
        A('v_pk_add_f32 %s, %s, %s op_sel_hi:[1,0] neg_lo:[0,1] neg_hi:[0,1]' % (v(d, 2), v(F + 2 * k, 2), v(T2, 2)))
        qq = v(q + 2 * (k & 1), 2)
        if k < 2:
            A('v_pk_mul_f32 %s, %s, %s' % (qq, v(d, 2), v(d, 2)))
        else:
            A('v_pk_fma_f32 %s, %s, %s, %s' % (qq, v(d, 2), v(d, 2), qq))
    A('v_pk_add_f32 %s, %s, %s' % (v(q, 2), v(q, 2), v(q + 2, 2)))
    A('v_add_f32 v%d, v%d, v%d' % (q, q, q + 1))
    red8(A, q, q + 1)
    A('v_mul_f32 v%d, %s, v%d' % (q, f32(1.0 / 448), q))
    A('v_cvt_pk_bf16_f32 v%d, v%d, v%d' % (q + 1, T2, q))
    A('v_lshlrev_b32 v%d, 16, v%d' % (T2, q + 1))
    A('v_and_b32 v%d, 0xffff0000, v%d' % (q, q + 1))
    A('v_add_f32 v%d, %s, v%d' % (q, f32(1e-5), q))
    A('v_cvt_pk_bf16_f32 v%d, v%d, v%d' % (q, q, q))
    A('v_lshlrev_b32 v%d, 16, v%d' % (q, q))
    A('v_sqrt_f32 v%d, v%d' % (q, q))
    A('v_cvt_pk_bf16_f32 v%d, v%d, v%d' % (q, q, q))
    A('v_lshlrev_b32 v%d, 16, v%d' % (q, q))
    rc = T2 + 4
    A('v_rcp_f32 v%d, v%d' % (rc, q))
    TA = O + 28
    for k in range(28):
        x = v(F + 2 * k, 2)
        a1, a2 = TA + 4 * (k & 1), TA + 2 + 4 * (k & 1)
        A('v_pk_add_f32 %s, %s, %s op_sel_hi:[1,0] neg_lo:[0,1] neg_hi:[0,1]' % (x, x, v(T2, 2)))
        A('v_cvt_pk_bf16_f32 v%d, v%d, v%d' % (a1, F + 2 * k, F + 2 * k + 1))
        A('v_lshlrev_b32 v%d, 16, v%d' % (F + 2 * k, a1))
        A('v_and_b32 v%d, 0xffff0000, v%d' % (F + 2 * k + 1, a1))
        A('v_pk_mul_f32 %s, %s, %s op_sel_hi:[1,0]' % (v(a1, 2), x, v(rc, 2)))
        A('v_pk_fma_f32 %s, %s, %s, %s op_sel_hi:[1,0,1] neg_lo:[1,0,0] neg_hi:[1,0,0]' % (v(a2, 2), v(a1, 2), v(q, 2), x))
        A('v_pk_fma_f32 %s, %s, %s, %s op_sel_hi:[1,0,1]' % (v(a1, 2), v(a2, 2), v(rc, 2), v(a1, 2)))
        A('v_cvt_pk_bf16_f32 v%d, v%d, v%d' % (O + k, a1, a1 + 1))
        if k & 3 == 3:
            V('buffer_store_dwordx4 %s, v10, %s, s%d offen sc1' % (v(O + k - 3, 4), WS, sXO))
            A('s_add_u32 s%d, s%d, %d' % (sXO, sXO, 4096 if k < 27 else (128 - 6 * 4096) & 0xffffffff))
    A('s_add_u32 s%d, s%d, 1' % (sIT, sIT))
    A('s_cmp_eq_u32 s%d, 2' % sIT)
    A('s_cbranch_scc1 Z_lnend')
    V.wait('x1')
    for k in range(28):
        A('v_mov_b32 v%d, v%d' % (XR + k, XR1 + k))
    A('s_branch Z_ln')
    A.label('Z_lnend')
    A('v_min_u32 v13, -2, v13')
    A('v_lshlrev_b32 v11, 2, v1')
    A('s_lshl_b32 s%d, s%d, 8' % (sT0, sGW))
    A('s_add_u32 s%d, s%d, %d' % (sT0, sT0, L.MI))
    A('s_cmp_lt_u32 s%d, 28' % sGW)
    A('s_cselect_b32 s%d, s%d, 0x%x' % (sT0, sT0, OOB))
    A('buffer_store_dword v13, v11, %s, s%d offen sc1' % (WS, sT0))
    A('s_getreg_b32 s%d, hwreg(HW_REG_XCC_ID)' % sT0)
    A('s_and_b32 s%d, s%d, 7' % (sT0, sT0))
    A('s_cselect_b32 s%d, 0x10001, 1' % sT0)
    A('v_mov_b32 v%d, s%d' % (V_ONE, sT0))
    ps(A, 2)
    A('s_waitcnt vmcnt(0)')
    A('s_barrier')
    A('buffer_atomic_add v%d, v%d, %s, 0 offen offset:%d sc1' % (V_ONE, V_SIG, AUX, 4 * L.D0))
    ps(A, 3)
    pflush(A, 4)
    if DBG:
        A('s_mov_b32 s%d, s%d' % (sCODE, sTASK))
        tstamp(A, 0)
        A('v_mov_b32 v%d, s48' % V_T)
        A('buffer_store_dword v%d, v%d, %s, s46 offen offset:28' % (V_T, V_SIG, WS))
    A('s_cmp_lt_u32 s%d, 16' % S_ROLE)
    A('s_cbranch_scc1 roleA')
    A('s_sub_u32 s%d, s%d, 16' % (S_ROLE, S_ROLE))
    A('s_cmp_lt_u32 s%d, 14' % S_ROLE)
    A('s_cbranch_scc1 roleB')
    A('s_sub_u32 s%d, s%d, 14' % (S_ROLE, S_ROLE))
    A('s_branch roleP')
```

```python
NSEG = 64
TILE = 28672
def _al(x, a=4096): return (x + a - 1) // a * a
off = 0
def alloc(n):
    global off
    o = off
    off = _al(off + n)
    return o
CTL = alloc(65536)
MI = alloc(NSEG * 7168)
LIS = 10240
LI = alloc(NSEG * LIS)
MX = alloc(16 * TILE)
SENT_BEG, SENT_END = MI + 7168, off
FW = alloc(4096)
XF = alloc(NSEG * TILE)
WF = alloc(504 * TILE)
W2F = alloc(56 * TILE)
QF = alloc(NSEG * 16 * TILE)
UF = alloc(NSEG * 16 * TILE)
HF = alloc(NSEG * 4 * TILE)
YF = alloc(NSEG * 8 * 14 * 1024)
PX = alloc(NSEG * 16 * 2048)
PM = alloc(NSEG * 8 * 1024)
FF = alloc(4 * NSEG * 14 * 4096)
DBG = alloc(1 << 20)
WS_USED = off
WS_SIZE = 268435456
assert WS_USED <= WS_SIZE
def ctl(i): return CTL + i * 128
C_SEG = 0
C_U = 0
C_Q = 64
C_H = 128
C_P = 192
C_F = 256
C_FP = 320
C_FM = 336
C_Y = 400
C_ROLE = 416
C_XQ = 417
C_GQ = 424
C_T = 425
U_TARGET = 28
D0 = 4
def D2(x): return 16 + 32 * (x & 1) + x
DZ = 40
if __name__ == '__main__':
    for k, v in list(globals().items()):
        if isinstance(v, int): print(k, hex(v), v)
```

```python
import os
from asm import *
from util import *
import layout as L
import wrap

WS = 's[8:11]'
AUX = 's[4:7]'
S_ROLE, S_W, S_MODE, S_SPIN = 12, 13, 15, 25
sTASK, sT0, sT1, sT2, sT3 = 16, 17, 18, 19, 20
sWT0, sWT1, sX, sXS, sO0, sO1, sOS, sCNT, sCS, sN, sI, sRB, sWB, sDEP, sYS, sSEG, sSG = 26, 27, 28, 29, 30, 31, 32, 33, 34, 35, 36, 37, 38, 39, 40, 41, 42
V_L16, V_Z, V_SIG, V_ONE, V_RD, V_T = 2, 3, 4, 5, 6, 7
SLOT = 131072
MAIN_LDS = 163840
WSPIN = int(os.environ.get('WSPIN', 1 << 16))
N_T, N_H, N_F = 28, 56, 64
G_S, G_O = 16, 28
N_PRE = N_T + N_H + N_F
N_ALL = N_PRE + 16 * (G_S + G_O)
K_ROLE, K_QU, K_GQ = 0, 1, 2
for _t in range(704):
    assert (_t * 1490) >> 16 == _t // 44
for _t in range(112):
    assert (_t * 4682) >> 16 == _t // 14
for _t in range(56):
    assert (_t * 9363) >> 16 == _t // 7


DBG = int(os.environ.get('DBG', 0))
QDEL = int(os.environ.get('QDEL', 1))
sCODE = 43


def tstamp(A, k):
    if not DBG:
        return
    A('s_memrealtime s[44:45]')
    A('s_lshl_b32 s46, s%d, 5' % sCODE)
    A('s_add_u32 s46, s46, %d' % (L.DBG + 0x80000 + 4 * k))
    A('s_waitcnt lgkmcnt(0)')
    A('v_mov_b32 v%d, s44' % V_T)
    A('buffer_store_dword v%d, v%d, %s, s46 offen' % (V_T, V_SIG, WS))


def wait_cnt(A, tag, s_addr, target, sleep=4):
    A.label(tag)
    A('buffer_load_dword v%d, v%d, %s, s%d offen sc1' % (V_T, V_Z, WS, s_addr))
    A('s_waitcnt vmcnt(0)')
    A('v_readfirstlane_b32 s%d, v%d' % (sT3, V_T))
    A('s_cmp_ge_u32 s%d, %d' % (sT3, target))
    A('s_cbranch_scc1 %s_ok' % tag)
    A('s_sub_u32 s%d, s%d, 1' % (S_SPIN, S_SPIN))
    A('s_cbranch_scc1 abort')
    A('s_sleep %d' % sleep)
    A('s_branch %s' % tag)
    A.label(tag + '_ok')


def check(regs, t):
    out = []
    regs = list(regs)
    out.append('v_max3_u32 v%d, v%d, v%d, v%d' % (t, regs[0], regs[1], regs[2]))
    rest = regs[3:]
    while len(rest) >= 2:
        out.append('v_max3_u32 v%d, v%d, v%d, v%d' % (t, t, rest[0], rest[1]))
        rest = rest[2:]
    if rest:
        out.append('v_max_u32 v%d, v%d, v%d' % (t, t, rest[0]))
    out.append('v_cmp_eq_u32 vcc, -1, v%d' % t)
    return out


def pop(A, s_addr, inc, dst):
    A('v_mov_b32 v%d, %s' % (V_T, inc))
    A('s_mov_b64 exec, 1')
    A('buffer_atomic_add v%d, v%d, %s, s%d offen sc0 sc1' % (V_T, V_Z, WS, s_addr))
    A('s_mov_b64 exec, -1')
    A('s_waitcnt vmcnt(0)')
    A('v_readfirstlane_b32 s%d, v%d' % (dst, V_T))


def wait_start(A, tag, t0, t1, t2, d0=True, d1=True, d2=False, first=False):
    m = 0
    if d0:
        m |= 1 << L.D0
    if d1:
        m |= 1 << L.DZ
    if d2:
        for x in range(5, 8):
            m |= 1 << L.D2(x)
    if first:
        A('s_branch %s_chk' % tag)
    else:
        A('v_lshlrev_b32 v%d, 2, v1' % t0)
    A.label(tag)
    A('buffer_load_dword v%d, v%d, %s, 0 offen sc1' % (t1, t0, AUX))
    A('s_waitcnt vmcnt(0)')
    A.label(tag + '_chk')
    A('v_and_b32 v%d, 0xffff, v%d' % (t2, t1))
    A('v_cmp_gt_u32 vcc, 32, v%d' % t2)
    A('s_and_b32 vcc_lo, vcc_lo, 0x%x' % (m & 0xffffffff))
    A('s_and_b32 vcc_hi, vcc_hi, 0x%x' % (m >> 32))
    A('s_or_b32 vcc_lo, vcc_lo, vcc_hi')
    A('s_cbranch_scc0 %s_ok' % tag)
    A('s_sub_u32 s%d, s%d, 1' % (S_SPIN, S_SPIN))
    A('s_cbranch_scc1 abort')
    A('s_sleep 8')
    A('s_branch %s' % tag)
    A.label(tag + '_ok')


def dispatcher(A):
    A.label('W_next')
    tstamp(A, 1)
    A('s_barrier')
    A('s_cmp_lg_u32 s%d, 0' % S_W)
    A('s_cbranch_scc1 W_bcast')
    A('s_mov_b32 s%d, %d' % (sT1, L.ctl(L.C_GQ)))
    pop(A, sT1, '1', sTASK)
    A('v_mov_b32 v8, %d' % SLOT)
    A('v_mov_b32 v%d, s%d' % (V_T, sTASK))
    A('ds_write_b32 v8, v%d' % V_T)
    A('s_waitcnt lgkmcnt(0)')
    A.label('W_bcast')
    A('s_barrier')
    A('v_mov_b32 v8, %d' % SLOT)
    A('ds_read_b32 v%d, v8' % V_T)
    A('s_waitcnt lgkmcnt(0)')
    A('v_readfirstlane_b32 s%d, v%d' % (sTASK, V_T))
    if DBG:
        A('s_add_u32 s%d, s%d, 256' % (sCODE, sTASK))
        tstamp(A, 0)
    A('s_cmp_lt_u32 s%d, %d' % (sTASK, N_T))
    A('s_cbranch_scc1 T_T')
    A('s_sub_u32 s%d, s%d, %d' % (sTASK, sTASK, N_T))
    A('s_cmp_lt_u32 s%d, %d' % (sTASK, N_H))
    A('s_cbranch_scc1 T_H')
    A('s_sub_u32 s%d, s%d, %d' % (sTASK, sTASK, N_H))
    A('s_cmp_lt_u32 s%d, %d' % (sTASK, N_F))
    A('s_cbranch_scc1 T_F')
    A('s_sub_u32 s%d, s%d, %d' % (sTASK, sTASK, N_F))
    A('s_cmp_ge_u32 s%d, %d' % (sTASK, N_ALL - N_PRE))
    A('s_cbranch_scc1 W_quit')
    A('s_mul_i32 s%d, s%d, 1490' % (sSG, sTASK))
    A('s_lshr_b32 s%d, s%d, 16' % (sSG, sSG))
    A('s_mul_i32 s%d, s%d, 44' % (sT0, sSG))
    A('s_sub_u32 s%d, s%d, s%d' % (sTASK, sTASK, sT0))
    A('s_cmp_lt_u32 s%d, %d' % (sTASK, G_S))
    A('s_cbranch_scc1 T_S')
    A('s_sub_u32 s%d, s%d, %d' % (sTASK, sTASK, G_S))
    A('s_branch T_O')
    A.label('W_quit')
    A('s_endpgm')
    A.label('abort')
    wrap.srd(A, 4, 88, 256)
    A('v_mov_b32 v2, 0xdead')
    A('v_mov_b32 v3, s%d' % sTASK)
    A('v_mov_b32 v0, 0')
    A('s_waitcnt lgkmcnt(0)')
    A('s_mov_b64 exec, 1')
    A('buffer_store_dwordx2 v[2:3], v0, s[4:7], 0 offen sc1')
    A('s_waitcnt vmcnt(0)')
    A('s_endpgm')


ACC, XW, EP, YM = 64, 96, 128, 144
LA = 6


def signal(A, s_addr):
    A('buffer_atomic_add v%d, v%d, %s, s%d offen sc1' % (V_ONE, V_SIG, WS, s_addr))


def dma_x(A):
    out = []
    for k in range(7):
        pre = []
        if k == 0:
            pre = ['s_mov_b32 m0, s%d' % sWB]
        if k == 4:
            pre = ['s_add_u32 m0, s%d, 4096' % sWB, 's_add_u32 s%d, s%d, 4096' % (sT0, sX)]
        out.append(pre + ['buffer_load_dwordx4 v%d, %s, s%d offen offset:%d sc1 lds' % (V_L16, WS, sX if k < 4 else sT0, (k & 3) * 1024)])
    out[-1] += ['s_add_u32 s%d, s%d, s%d' % (sX, sX, sXS),
                's_add_u32 s%d, s%d, %d' % (sWB, sWB, L.TILE),
                's_cmp_ge_u32 s%d, %d' % (sWB, 3 * L.TILE),
                's_cselect_b32 s%d, %d, 0' % (sT0, 3 * L.TILE),
                's_sub_u32 s%d, s%d, s%d' % (sWB, sWB, sT0)]
    return out


def rd(i):
    return 'ds_read_b128 %s, v%d offset:%d' % (v(XW + 4 * (i % 8), 4), V_RD, i * 1024)


def mf_phase(A, uform, fill):
    fill = list(fill)
    for i in range(28):
        A('s_waitcnt lgkmcnt(%d)' % (min(27, i + LA - 1) - i))
        for t in range(2):
            acc = v(ACC + 16 * t, 16)
            w, x = a(112 * t + 4 * i, 4), v(XW + 4 * (i % 8), 4)
            A('%s %s, %s, %s, %s' % (MF32, acc, x if uform else w, w if uform else x, acc if i else '0'))
            if t == 0 and i + LA < 28:
                A(rd(i + LA))
            if t == 1 and fill and i % 2 == 1:
                for x in fill.pop(0):
                    A(x)
    assert not fill


def epilogue(A, kind):
    if kind == 'F':
        for t in range(2):
            for rq in range(4):
                A('buffer_store_dwordx4 %s, v%d, %s, s%d offen offset:%d sc1' % (v(ACC + 16 * t + 4 * rq, 4), V_L16, WS, (sO0, sO1)[t], rq * 1024))
    elif kind == 'Y':
        for sq in range(4):
            for t in range(2):
                for k in range(2):
                    x = ACC + 16 * t + 4 * sq + 2 * k
                    A('v_cvt_pk_bf16_f32 v%d, v%d, v%d' % (EP + 4 * sq + 2 * t + k, x, x + 1))
            A('buffer_store_dwordx4 %s, v%d, %s, s%d offen sc1' % (v(EP + 4 * sq, 4), V_L16, WS, sO0))
            A('s_add_u32 s%d, s%d, %d' % (sO0, sO0, 112 * 1024))
        return
    else:
        for t in range(2):
            for hf in range(2):
                e = EP + 8 * t + 4 * hf
                for k in range(4):
                    x = ACC + 16 * t + 8 * hf + 2 * k
                    A('v_cvt_pk_bf16_f32 v%d, v%d, v%d' % (e + k, x, x + 1))
                    if kind == 'H':
                        A('v_pk_max_i16 v%d, v%d, 0' % (e + k, e + k))
                A('buffer_store_dwordx4 %s, v%d, %s, s%d offen offset:%d sc1' % (v(e, 4), V_L16, WS, (sO0, sO1)[t], hf * 1024))
    A('s_add_u32 s%d, s%d, s%d' % (sO0, sO0, sOS))
    A('s_add_u32 s%d, s%d, s%d' % (sO1, sO1, sOS))


def engine(A, kind):
    tag = 'E' + kind
    A.label(tag)
    n = 0
    for t in range(2):
        for kb in range(28):
            if kb % 4 == 0:
                A('s_add_u32 s%d, s%d, %d' % (sT0, (sWT0, sWT1)[t], kb * 1024))
            A('buffer_load_dwordx4 %s, v%d, %s, s%d offen offset:%d' % (a(112 * t + 4 * kb, 4), V_L16, WS, sT0, (kb & 3) * 1024))
    A('s_mul_i32 s%d, s%d, 7168' % (sWB, S_W))
    A('s_add_u32 s%d, s%d, s%d' % (sX, sX, sWB))
    A('s_mov_b32 s%d, 0' % sRB)
    A('s_mov_b32 s%d, 0' % sI)
    A('s_waitcnt vmcnt(40)')
    for k in range(2):
        if kind == 'F':
            wait_cnt(A, tag + '_d%d' % k, sDEP, 7)
            A('s_add_u32 s%d, s%d, s%d' % (sDEP, sDEP, sCS))
        for g in dma_x(A):
            for x in g:
                A(x)
    A.label(tag + '_top')
    A('v_add_u32 v%d, s%d, v%d' % (V_RD, sRB, V_L16))
    A('s_waitcnt vmcnt(7)')
    A('s_barrier')
    for i in range(LA):
        A(rd(i))
    A('s_add_u32 s%d, s%d, %d' % (sRB, sRB, L.TILE))
    A('s_cmp_ge_u32 s%d, %d' % (sRB, 3 * L.TILE))
    A('s_cselect_b32 s%d, 0, s%d' % (sRB, sRB))
    A('s_cmp_lt_u32 s%d, 2' % sI)
    A('s_cbranch_scc1 %s_nosig' % tag)
    signal(A, sCNT)
    A('s_add_u32 s%d, s%d, s%d' % (sCNT, sCNT, sCS))
    if DBG:
        A('s_cmp_lg_u32 s%d, 2' % sI)
        A('s_cbranch_scc1 %s_nosig' % tag)
        tstamp(A, 4)
    A.label(tag + '_nosig')
    A('s_cmp_lt_u32 s%d, 1' % sI)
    A('s_cbranch_scc1 %s_noepi' % tag)
    epilogue(A, kind)
    A.label(tag + '_noepi')
    A('s_add_u32 s%d, s%d, 1' % (sI, sI))
    if kind == 'F':
        A('s_add_u32 s%d, s%d, 1' % (sT0, sI))
        A('s_cmp_ge_u32 s%d, s%d' % (sT0, sN))
        A('s_cbranch_scc1 %s_d2_ok' % tag)
        wait_cnt(A, tag + '_d2', sDEP, 7)
        A('s_add_u32 s%d, s%d, s%d' % (sDEP, sDEP, sCS))
    mf_phase(A, kind == 'U', dma_x(A))
    A('s_cmp_lt_u32 s%d, s%d' % (sI, sN))
    A('s_cbranch_scc1 %s_top' % tag)
    epilogue(A, kind)
    A('s_waitcnt vmcnt(0)')
    A('s_barrier')
    signal(A, sCNT)
    A('s_add_u32 s%d, s%d, s%d' % (sCNT, sCNT, sCS))
    signal(A, sCNT)
    if kind in 'QU':
        wait_start(A, tag + '_s2', 9, 10, 11, False, False, True)
    if kind != 'U':
        A('s_branch W_next')
        return
    tstamp(A, 2)
    A('s_cmp_eq_u32 s%d, 0' % sYS)
    A('s_cbranch_scc1 W_next')
    A('s_mov_b32 s%d, s%d' % (sO0, sYS))
    A('s_mul_i32 s%d, s%d, 7168' % (sWB, S_W))
    A('s_add_u32 s%d, s%d, %d' % (sX, sWB, L.MX))
    A('v_add_u32 v8, s%d, v%d' % (sWB, V_L16))
    A('v_mov_b32 v%d, v%d' % (V_RD, V_L16))
    A('s_mov_b32 s%d, %d' % (sCNT, L.ctl(L.C_Y)))
    A('s_mov_b32 s%d, 0' % sI)
    A.label('EY_top')
    A('s_add_u32 s%d, s%d, 4096' % (sT0, sX))
    for k in range(7):
        A('buffer_load_dwordx4 %s, v%d, %s, s%d offen offset:%d sc1' % (v(YM + 4 * k, 4), V_L16, WS, sX if k < 4 else sT0, (k & 3) * 1024))
    A('s_waitcnt vmcnt(0)')
    for x in check(range(YM, YM + 28), V_T):
        A(x)
    A('s_cbranch_vccz EY_ok')
    A('s_sub_u32 s%d, s%d, 1' % (S_SPIN, S_SPIN))
    A('s_cbranch_scc1 abort')
    A('s_sleep 6')
    A('s_branch EY_top')
    A.label('EY_ok')
    tstamp(A, 3)
    for k in range(7):
        A('ds_write_b128 v8, %s offset:%d' % (v(YM + 4 * k, 4), k * 1024))
    A('s_waitcnt lgkmcnt(0)')
    A('s_barrier')
    for i in range(LA):
        A(rd(i))
    mf_phase(A, True, [])
    epilogue(A, 'Y')
    A('s_waitcnt vmcnt(0)')
    A('s_barrier')
    signal(A, sCNT)
    A('s_add_u32 s%d, s%d, 128' % (sCNT, sCNT))
    A('s_add_u32 s%d, s%d, %d' % (sX, sX, L.TILE))
    A('s_add_u32 s%d, s%d, 1' % (sI, sI))
    A('s_cmp_lt_u32 s%d, 16' % sI)
    A('s_cbranch_scc1 EY_top')
    A('s_branch W_next')


def task_QU(A):
    A.label('T_QU')
    A('s_cmp_lt_u32 s%d, 112' % sTASK)
    A('s_cselect_b32 s%d, 4, 0' % sT1)
    A('s_cselect_b32 s%d, 0, 112' % sT0)
    A('s_sub_u32 s%d, s%d, s%d' % (sTASK, sTASK, sT0))
    A('s_lshr_b32 s%d, s%d, 2' % (sT0, sTASK))
    A('s_lshl_b32 s%d, s%d, 2' % (sT0, sT0))
    A('s_add_u32 s%d, s%d, s%d' % (sTASK, sTASK, sT0))
    A('s_add_u32 s%d, s%d, s%d' % (sTASK, sTASK, sT1))
    A('s_and_b32 s%d, s%d, 3' % (sSEG, sTASK))
    A('s_lshr_b32 s%d, s%d, 3' % (sT0, sTASK))
    A('s_lshl_b32 s%d, s%d, 2' % (sT0, sT0))
    A('s_add_u32 s%d, s%d, s%d' % (sT0, sT0, S_W))
    A('s_mul_i32 s%d, s%d, 4682' % (sT1, sT0))
    A('s_lshr_b32 s%d, s%d, 16' % (sT1, sT1))
    A('s_mul_i32 s%d, s%d, %d' % (sT2, sT1, 512 - 112))
    A('s_lshl_b32 s%d, s%d, 3' % (sT3, sT0))
    A('s_add_u32 s%d, s%d, s%d' % (sT2, sT2, sT3))
    A('s_bfe_u32 s%d, s%d, 0x10002' % (sT3, sTASK))
    A('s_lshl_b32 s%d, s%d, 7' % (sT3, sT3))
    A('s_add_u32 s%d, s%d, s%d' % (sT2, sT2, sT3))
    A('s_add_u32 s%d, s%d, %d' % (sDEP, sT2, L.FW))
    A('v_and_b32 v8, 1, v1')
    A('v_lshlrev_b32 v8, 2, v8')
    A('v_bfe_u32 v9, v1, 1, 1')
    A('v_lshl_add_u32 v8, v9, 8, v8')
    A('s_mul_i32 s%d, s%d, 14' % (sT1, sT1))
    A('s_add_u32 s%d, s%d, s%d' % (sT1, sT1, sT0))
    A('s_mul_i32 s%d, s%d, %d' % (sWT0, sT1, L.TILE))
    A('s_lshl_b32 s%d, s%d, 11' % (sO0, sT1))
    A('s_mul_i32 s%d, s%d, %d' % (sT1, sSEG, 16 * L.TILE))
    A('s_add_u32 s%d, s%d, s%d' % (sO0, sO0, sT1))
    A('s_mul_i32 s%d, s%d, %d' % (sX, sSEG, L.TILE))
    A('s_add_u32 s%d, s%d, %d' % (sX, sX, L.XF))
    A('s_mov_b32 s%d, %d' % (sXS, 4 * L.TILE))
    A('s_mov_b32 s%d, %d' % (sOS, 64 * L.TILE))
    A('s_lshl_b32 s%d, s%d, 7' % (sCNT, sSEG))
    A('s_mov_b32 s%d, 512' % sCS)
    A('s_mov_b32 s%d, 16' % sN)
    A('s_lshl_b32 s%d, s%d, 10' % (sYS, sT0))
    A('s_add_u32 s%d, s%d, %d' % (sYS, sYS, L.YF))
    A('s_cmp_eq_u32 s%d, 3' % sSEG)
    A('s_cselect_b32 s%d, s%d, 0' % (sYS, sYS))
    A('s_bitcmp1_b32 s%d, 2' % sTASK)
    A('s_cselect_b32 s%d, %d, 0' % (sT0, 224 * L.TILE))
    A('s_cselect_b32 s%d, %d, 0' % (sT1, L.UF - L.QF))
    A('s_cselect_b32 s%d, %d, %d' % (sT2, L.ctl(L.C_U), L.ctl(L.C_Q)))
    A('s_add_u32 s%d, s%d, s%d' % (sWT0, sWT0, sT0))
    A('s_add_u32 s%d, s%d, %d' % (sWT0, sWT0, L.WF))
    A('s_add_u32 s%d, s%d, %d' % (sWT1, sWT0, 14 * L.TILE))
    A('s_add_u32 s%d, s%d, s%d' % (sO0, sO0, sT1))
    A('s_add_u32 s%d, s%d, %d' % (sO0, sO0, L.QF))
    A('s_add_u32 s%d, s%d, %d' % (sO1, sO0, 14 * 2048))
    A('s_add_u32 s%d, s%d, s%d' % (sCNT, sCNT, sT2))
    A.label('T_QU_w')
    A('buffer_load_dword v9, v8, %s, s%d offen sc1' % (WS, sDEP))
    A('s_waitcnt vmcnt(0)')
    A('v_cmp_gt_u32 vcc, 7, v9')
    A('s_cbranch_vccz T_QU_ok')
    A('s_sub_u32 s%d, s%d, 1' % (S_SPIN, S_SPIN))
    A('s_cbranch_scc1 abort')
    A('s_sleep 2')
    A('s_branch T_QU_w')
    A.label('T_QU_ok')
    tstamp(A, 5)
    A('s_bitcmp1_b32 s%d, 2' % sTASK)
    A('s_cbranch_scc1 EU')
    if QDEL:
        A('s_mov_b32 s%d, %d' % (sT0, L.ctl(L.C_U) + 128 * (QDEL - 1)))
        wait_cnt(A, 'T_QU_q', sT0, 28, 16)
    A('s_branch EQ')


def task_H(A):
    A.label('T_H')
    A('s_mul_i32 s%d, s%d, 9363' % (sSEG, sTASK))
    A('s_lshr_b32 s%d, s%d, 16' % (sSEG, sSEG))
    A('s_mul_i32 s%d, s%d, 7' % (sT0, sSEG))
    A('s_sub_u32 s%d, s%d, s%d' % (sT0, sTASK, sT0))
    A('s_lshl_b32 s%d, s%d, 2' % (sT0, sT0))
    A('s_add_u32 s%d, s%d, s%d' % (sT0, sT0, S_W))
    A('s_mul_i32 s%d, s%d, %d' % (sWT0, sT0, 2 * L.TILE))
    A('s_add_u32 s%d, s%d, %d' % (sWT0, sWT0, L.WF + 448 * L.TILE))
    A('s_add_u32 s%d, s%d, %d' % (sWT1, sWT0, L.TILE))
    A('s_lshl_b32 s%d, s%d, 12' % (sO0, sT0))
    A('s_mul_i32 s%d, s%d, %d' % (sT1, sSEG, 32 * L.TILE))
    A('s_add_u32 s%d, s%d, s%d' % (sO0, sO0, sT1))
    A('s_add_u32 s%d, s%d, %d' % (sO0, sO0, L.HF))
    A('s_add_u32 s%d, s%d, 2048' % (sO1, sO0))
    A('s_mov_b32 s%d, %d' % (sOS, 4 * L.TILE))
    A('s_mul_i32 s%d, s%d, %d' % (sX, sSEG, 8 * L.TILE))
    A('s_add_u32 s%d, s%d, %d' % (sX, sX, L.XF))
    A('s_mov_b32 s%d, %d' % (sXS, L.TILE))
    A('s_lshl_b32 s%d, s%d, 10' % (sCNT, sSEG))
    A('s_add_u32 s%d, s%d, %d' % (sCNT, sCNT, L.ctl(L.C_H)))
    A('s_mov_b32 s%d, 128' % sCS)
    A('s_mov_b32 s%d, 8' % sN)
    A('s_mov_b32 s%d, %d' % (sT0, L.ctl(L.C_T)))
    wait_cnt(A, 'T_H_w', sT0, N_T)
    A('s_branch EH')


def task_F(A):
    A.label('T_F')
    A('s_lshr_b32 s%d, s%d, 3' % (sSEG, sTASK))
    A('s_and_b32 s%d, s%d, 7' % (sT0, sTASK))
    A('s_mul_i32 s%d, s%d, 7' % (sT0, sT0))
    A('s_lshl_b32 s%d, s%d, 1' % (sT1, S_W))
    A('s_add_u32 s%d, s%d, s%d' % (sT0, sT0, sT1))
    A('s_mul_i32 s%d, s%d, %d' % (sWT0, sT0, L.TILE))
    A('s_add_u32 s%d, s%d, %d' % (sWT0, sWT0, L.W2F))
    A('s_add_u32 s%d, s%d, %d' % (sWT1, sWT0, L.TILE))
    A('s_lshl_b32 s%d, s%d, 12' % (sO0, sT0))
    A('s_mul_i32 s%d, s%d, %d' % (sT1, sSEG, 8 * 56 * 4096))
    A('s_add_u32 s%d, s%d, s%d' % (sO0, sO0, sT1))
    A('s_add_u32 s%d, s%d, %d' % (sO0, sO0, L.FF))
    A('s_add_u32 s%d, s%d, 4096' % (sO1, sO0))
    A('s_cmp_eq_u32 s%d, 3' % S_W)
    A('s_cselect_b32 s%d, 0x%x, s%d' % (sO1, OOB, sO1))
    A('s_cselect_b32 s%d, s%d, s%d' % (sWT1, sWT0, sWT1))
    A('s_mov_b32 s%d, %d' % (sOS, 56 * 4096))
    A('s_bfe_u32 s%d, s%d, 0x20001' % (sT0, sTASK))
    A('s_lshl_b32 s%d, s%d, 5' % (sT1, sSEG))
    A('s_add_u32 s%d, s%d, s%d' % (sT0, sT0, sT1))
    A('s_mul_i32 s%d, s%d, %d' % (sX, sT0, L.TILE))
    A('s_add_u32 s%d, s%d, %d' % (sX, sX, L.HF))
    A('s_mov_b32 s%d, %d' % (sXS, 4 * L.TILE))
    A('s_lshl_b32 s%d, s%d, 10' % (sCNT, sSEG))
    A('s_add_u32 s%d, s%d, %d' % (sDEP, sCNT, L.ctl(L.C_H)))
    A('s_add_u32 s%d, s%d, %d' % (sCNT, sCNT, L.ctl(L.C_F)))
    A('s_mov_b32 s%d, 128' % sCS)
    A('s_mov_b32 s%d, 8' % sN)
    A('s_mov_b32 s%d, %d' % (sT0, L.ctl(L.C_T)))
    wait_cnt(A, 'T_F_w', sT0, N_T)
    A('s_branch EF')


def task_T(A):
    A.label('T_T')
    A('s_lshl_b32 s%d, s%d, 2' % (sT0, sTASK))
    A('s_add_u32 s%d, s%d, s%d' % (sT0, sT0, S_W))
    A('s_mul_i32 s%d, s%d, %d' % (sO0, sT0, L.TILE))
    A('s_add_u32 s%d, s%d, %d' % (sO0, sO0, L.WF + 448 * L.TILE))
    assert L.W2F == L.WF + 504 * L.TILE
    A('v_lshrrev_b32 v8, 2, v1')
    A('v_and_b32 v9, 3, v1')
    A('s_cmp_ge_u32 s%d, 14' % sTASK)
    A('s_cbranch_scc1 T_T2')
    wrap.srd(A, 4, 64, 448 * 1792 * 2)
    A('s_lshl_b32 s%d, s%d, 6' % (sX, sT0))
    A('s_mov_b32 s%d, 3584' % sXS)
    A('s_branch T_T3')
    A.label('T_T2')
    wrap.srd(A, 4, 72, 448 * 1792 * 2)
    A('s_sub_u32 s%d, s%d, 56' % (sT0, sT0))
    A('s_mul_i32 s%d, s%d, 4682' % (sT1, sT0))
    A('s_lshr_b32 s%d, s%d, 16' % (sT1, sT1))
    A('s_mul_i32 s%d, s%d, 14' % (sT2, sT1))
    A('s_sub_u32 s%d, s%d, s%d' % (sT0, sT0, sT2))
    A('s_lshl_b32 s%d, s%d, 6' % (sX, sT0))
    A('s_mul_i32 s%d, s%d, %d' % (sT1, sT1, 448 * 896))
    A('s_add_u32 s%d, s%d, s%d' % (sX, sX, sT1))
    A('s_mov_b32 s%d, 896' % sXS)
    A.label('T_T3')
    A('v_mul_lo_u32 v8, v8, s%d' % sXS)
    A('v_lshl_add_u32 v8, v9, 4, v8')
    A('s_lshl_b32 s%d, s%d, 4' % (sXS, sXS))
    A('s_mul_i32 s%d, s%d, %d' % (sWB, S_W, L.TILE))
    A('s_waitcnt lgkmcnt(0)')
    for n in range(28):
        A('s_add_u32 m0, s%d, %d' % (sWB, n * 1024))
        A('buffer_load_dwordx4 v8, %s, s%d offen lds' % (AUX, sX))
        A('s_add_u32 s%d, s%d, s%d' % (sX, sX, sXS))
    tr_addr(A, 9, 10)
    A('v_add_u32 v9, s%d, v9' % sWB)
    for q in range(4):
        A('s_waitcnt vmcnt(%d)' % (21 - 7 * q + 7 * q))
        for k in range(7):
            for u in range(2):
                A('ds_read_b64_tr_b16 %s, v9 offset:%d' % (v(16 + 28 * q + 4 * k + 2 * u, 2), (7 * q + k) * 1024 + u * 256))
        A('s_add_u32 s%d, s%d, 4096' % (sT0, sO0))
        for k in range(7):
            A('s_waitcnt lgkmcnt(%d)' % (12 - 2 * k))
            A('buffer_store_dwordx4 %s, v%d, %s, s%d offen offset:%d sc1' % (v(16 + 28 * q + 4 * k, 4), V_L16, WS, sO0 if k < 4 else sT0, (k & 3) * 1024))
        A('s_add_u32 s%d, s%d, 7168' % (sO0, sO0))
    A('s_waitcnt vmcnt(0)')
    A('s_barrier')
    A('s_mov_b32 s%d, %d' % (sT0, L.ctl(L.C_T)))
    signal(A, sT0)
    A('s_branch W_next')


def task_S(A):
    MXR, SX, SM, TT = 16, 48, 64, 128
    A.label('T_S')
    A('s_lshr_b32 s%d, s%d, 2' % (sI, sTASK))
    A('s_lshl_b32 s%d, s%d, 2' % (sSEG, sSG))
    A('s_add_u32 s%d, s%d, s%d' % (sSEG, sSEG, sI))
    A('s_and_b32 s%d, s%d, 3' % (sT0, sTASK))
    A('s_lshl_b32 s%d, s%d, 2' % (sT0, sT0))
    A('s_add_u32 s%d, s%d, s%d' % (sT0, sT0, S_W))
    A('s_lshl_b32 s%d, s%d, 4' % (sN, sSEG))
    A('s_add_u32 s%d, s%d, s%d' % (sN, sN, sT0))
    A('s_mul_i32 s%d, s%d, %d' % (sX, sSEG, L.TILE))
    A('s_add_u32 s%d, s%d, %d' % (sX, sX, L.XF))
    for kb in range(28):
        if kb and kb % 4 == 0:
            A('s_add_u32 s%d, s%d, 4096' % (sX, sX))
        A('buffer_load_dwordx4 %s, v%d, %s, s%d offen offset:%d' % (a(112 + 4 * kb, 4), V_L16, WS, sX, (kb & 3) * 1024))
    A('s_lshl_b32 s%d, s%d, 7' % (sCNT, sSEG))
    A('s_add_u32 s%d, s%d, %d' % (sT0, sCNT, L.ctl(L.C_Q)))
    wait_cnt(A, 'T_S_q', sT0, 28)
    A('s_mul_i32 s%d, s%d, %d' % (sX, sN, L.TILE))
    A('s_add_u32 s%d, s%d, %d' % (sX, sX, L.QF))
    for kb in range(28):
        if kb and kb % 4 == 0:
            A('s_add_u32 s%d, s%d, 4096' % (sX, sX))
        A('buffer_load_dwordx4 %s, v%d, %s, s%d offen offset:%d sc1' % (a(4 * kb, 4), V_L16, WS, sX, (kb & 3) * 1024))
    A('v_bfe_u32 v9, v1, 3, 2')
    A('v_lshlrev_b32 v8, 10, v9')
    A('v_lshrrev_b32 v9, 5, v1')
    A('v_lshl_add_u32 v8, v9, 9, v8')
    A('v_and_b32 v10, 7, v1')
    A('v_lshl_add_u32 v8, v10, 4, v8')
    A('s_mul_i32 s%d, s%d, %d' % (sX, sSG, L.TILE))
    A('s_lshl_b32 s%d, s%d, 7' % (sT0, sI))
    A('s_add_u32 s%d, s%d, s%d' % (sX, sX, sT0))
    A('s_add_u32 s%d, s%d, %d' % (sX, sX, L.MX))
    A('v_and_b32 v10, 31, v1')
    A('v_lshlrev_b32 v9, 2, v9')
    A('v_sub_u32 v10, v10, v9')
    A('v_mov_b32 v11, 0xff800000')
    for kb in range(28):
        A('s_waitcnt vmcnt(%d)' % (27 - kb))
        A('%s %s, %s, %s, %s' % (MF32, v(SX, 16), a(112 + 4 * kb, 4), a(4 * kb, 4), v(SX, 16) if kb else '0'))
    for r_ in range(16):
        A('v_cmp_le_i32 vcc, %d, v10' % (8 * (r_ >> 2) + (r_ & 3)))
        A('v_cndmask_b32 v%d, v11, v%d, vcc' % (SX + r_, SX + r_))
    mx = TT
    A('v_max3_f32 v%d, v%d, v%d, v%d' % (mx, SX, SX + 1, SX + 2))
    for k in range(3, 15, 2):
        A('v_max3_f32 v%d, v%d, v%d, v%d' % (mx, mx, SX + k, SX + k + 1))
    A('v_max_f32 v%d, v%d, v%d' % (mx, mx, SX + 15))
    A.label('T_S_m')
    A('s_mov_b32 s%d, s%d' % (sT0, sX))
    for k in range(7):
        A('buffer_load_dwordx4 %s, v8, %s, s%d offen sc1' % (v(MXR + 4 * k, 4), WS, sT0))
        if k < 6:
            A('s_add_u32 s%d, s%d, 4096' % (sT0, sT0))
    A('s_waitcnt vmcnt(0)')
    for x in check(range(MXR, MXR + 28), V_T):
        A(x)
    A('s_cbranch_vccz T_S_mok')
    A('s_sub_u32 s%d, s%d, 1' % (S_SPIN, S_SPIN))
    A('s_cbranch_scc1 abort')
    A('s_sleep 6')
    A('s_branch T_S_m')
    A.label('T_S_mok')
    tstamp(A, 2)
    for k in range(7):
        for q in range(4):
            acc = v(SM + 16 * q, 16)
            A('%s %s, %s, %s, %s' % (MF32, acc, v(MXR + 4 * k, 4), a(4 * (4 * k + q), 4), acc if k else '0'))
    A('s_lshl_b32 s%d, s%d, 11' % (sO0, sN))
    A('s_add_u32 s%d, s%d, %d' % (sO0, sO0, L.PX))
    A('s_lshr_b32 s%d, s%d, 1' % (sO1, sN))
    A('s_lshl_b32 s%d, s%d, 10' % (sO1, sO1))
    A('s_and_b32 s%d, s%d, 1' % (sT0, sN))
    A('s_lshl_b32 s%d, s%d, 3' % (sT0, sT0))
    A('s_add_u32 s%d, s%d, s%d' % (sO1, sO1, sT0))
    A('s_add_u32 s%d, s%d, %d' % (sO1, sO1, L.PM))
    A('s_add_u32 s%d, s%d, %d' % (sCNT, sCNT, L.ctl(L.C_P)))
    for k in range(2):
        A('v_pk_add_f32 %s, %s, %s' % (v(SM + 2 * k, 2), v(SM + 2 * k, 2), v(SM + 20 + 2 * k, 2)))
    for k in range(2):
        A('v_pk_add_f32 %s, %s, %s' % (v(SM + 40 + 2 * k, 2), v(SM + 40 + 2 * k, 2), v(SM + 60 + 2 * k, 2)))
    for k in range(2):
        A('v_pk_add_f32 %s, %s, %s' % (v(SM + 2 * k, 2), v(SM + 2 * k, 2), v(SM + 40 + 2 * k, 2)))
    assert SM == SX + 16
    A('v_max3_f32 v%d, v%d, v%d, v%d' % (mx, mx, SM, SM + 1))
    A('v_max3_f32 v%d, v%d, v%d, v%d' % (mx, mx, SM + 2, SM + 3))
    A('v_mov_b32 v%d, v%d' % (mx + 1, mx))
    A('v_permlane32_swap_b32 v%d, v%d' % (mx, mx + 1))
    A('v_max_f32 v%d, v%d, v%d' % (mx, mx, mx + 1))
    for k in range(10):
        x = v(SX + 2 * k, 2)
        A('v_pk_add_f32 %s, %s, %s op_sel_hi:[1,0] neg_lo:[0,1] neg_hi:[0,1]' % (x, x, v(mx, 2)))
        A('v_exp_f32 v%d, v%d' % (SX + 2 * k, SX + 2 * k))
        A('v_exp_f32 v%d, v%d' % (SX + 2 * k + 1, SX + 2 * k + 1))
    sm = TT + 2
    A('v_pk_add_f32 %s, %s, %s' % (v(sm, 2), v(SX, 2), v(SX + 2, 2)))
    for k in range(2, 10):
        A('v_pk_add_f32 %s, %s, %s' % (v(sm, 2), v(sm, 2), v(SX + 2 * k, 2)))
    A('v_add_f32 v%d, v%d, v%d' % (sm, sm, sm + 1))
    A('v_mov_b32 v%d, v%d' % (sm + 1, sm))
    A('v_permlane32_swap_b32 v%d, v%d' % (sm, sm + 1))
    A('v_add_f32 v%d, v%d, v%d' % (sm, sm, sm + 1))
    A('v_rcp_f32 v%d, v%d' % (sm, sm))
    o = TT + 4
    for k in range(10):
        x = v(SX + 2 * k, 2)
        A('v_pk_mul_f32 %s, %s, %s op_sel_hi:[1,0]' % (x, x, v(sm, 2)))
        A('v_cvt_pk_bf16_f32 v%d, v%d, v%d' % (o + k, SX + 2 * k, SX + 2 * k + 1))
        if k in (3, 7):
            A('buffer_store_dwordx4 %s, v%d, %s, s%d offen offset:%d sc1' % (v(o + k - 3, 4), V_L16, WS, sO0, (k >> 2) * 1024))
    A('buffer_store_dwordx2 %s, v%d, %s, s%d offen sc1' % (v(o + 8, 2), V_L16, WS, sO1))
    A('s_waitcnt vmcnt(0)')
    A('s_mov_b64 exec, 1')
    A('buffer_atomic_add v%d, v%d, %s, s%d offen sc1' % (V_ONE, V_Z, WS, sCNT))
    A('s_mov_b64 exec, -1')
    A('s_branch W_next')


def task_O(A):
    FP, XV, PXR, PMR, YR, AC, RR = 16, 48, 64, 96, 104, 128, 160
    A.label('T_O')
    wrap.srd(A, 4, 0, 2048 * 448 * 2)
    A('s_mul_i32 s%d, s%d, 9363' % (sI, sTASK))
    A('s_lshr_b32 s%d, s%d, 16' % (sI, sI))
    A('s_mul_i32 s%d, s%d, 7' % (sT0, sI))
    A('s_sub_u32 s%d, s%d, s%d' % (sN, sTASK, sT0))
    A('s_lshl_b32 s%d, s%d, 2' % (sSEG, sSG))
    A('s_add_u32 s%d, s%d, s%d' % (sSEG, sSEG, sI))
    A('s_lshl_b32 s%d, s%d, 7' % (sCNT, sSEG))
    A('v_and_b32 v8, 31, v1')
    A('v_mul_u32_u24 v8, 896, v8')
    A('v_lshrrev_b32 v9, 5, v1')
    A('v_lshl_add_u32 v8, v9, 4, v8')
    A('s_mul_i32 s%d, s%d, %d' % (sO0, sSEG, 32 * 896))
    A('s_lshl_b32 s%d, s%d, 7' % (sT0, sN))
    A('s_add_u32 s%d, s%d, s%d' % (sO0, sO0, sT0))
    A('s_lshl_b32 s%d, s%d, 5' % (sT0, S_W))
    A('s_add_u32 s%d, s%d, s%d' % (sO0, sO0, sT0))
    A('s_waitcnt lgkmcnt(0)')
    A('buffer_load_dwordx4 %s, v8, %s, s%d offen' % (v(XV, 4), AUX, sO0))
    A('s_add_u32 s%d, s%d, %d' % (sT0, sCNT, L.ctl(L.C_U)))
    wait_cnt(A, 'T_O_u', sT0, 28)
    wrap.srd(A, 4, 80, 2048 * 448 * 2)
    A('s_lshl_b32 s%d, s%d, 2' % (sWT0, sSEG))
    A('s_add_u32 s%d, s%d, s%d' % (sWT0, sWT0, S_W))
    A('s_mul_i32 s%d, s%d, %d' % (sX, sWT0, 4 * L.TILE))
    A('s_lshl_b32 s%d, s%d, 12' % (sT0, sN))
    A('s_add_u32 s%d, s%d, s%d' % (sX, sX, sT0))
    A('s_add_u32 s%d, s%d, %d' % (sX, sX, L.UF))
    for hh in range(4):
        for k in range(4):
            A('buffer_load_dwordx4 %s, v%d, %s, s%d offen offset:%d sc1' % (a(16 * hh + 4 * k, 4), V_L16, WS, sX, k * 1024))
        A('s_add_u32 s%d, s%d, %d' % (sX, sX, L.TILE))
    A('s_add_u32 s%d, s%d, %d' % (sT0, sCNT, L.ctl(L.C_F)))
    wait_cnt(A, 'T_O_f', sT0, 8)
    A('s_mul_i32 s%d, s%d, %d' % (sX, sSEG, 56 * 4096))
    A('s_lshl_b32 s%d, s%d, 13' % (sT0, sN))
    A('s_add_u32 s%d, s%d, s%d' % (sX, sX, sT0))
    A('s_lshl_b32 s%d, s%d, 11' % (sT0, S_W))
    A('s_add_u32 s%d, s%d, s%d' % (sX, sX, sT0))
    A('s_add_u32 s%d, s%d, %d' % (sX, sX, L.FF))
    for fq in range(4):
        for k in range(2):
            A('buffer_load_dwordx4 %s, v%d, %s, s%d offen offset:%d sc1' % (v(FP + 8 * fq + 4 * k, 4), V_L16, WS, sX, k * 1024))
        A('s_add_u32 s%d, s%d, %d' % (sX, sX, 14 * 4096))
    A('s_lshl_b32 s%d, s%d, 13' % (sT0, S_W))
    A('v_add_u32 v9, s%d, v%d' % (sT0, V_L16))
    A('s_lshl_b32 s%d, s%d, 11' % (sT0, S_W))
    A('v_add_u32 v10, s%d, v%d' % (sT0, V_L16))
    A('s_waitcnt vmcnt(0)')
    for k in range(4):
        A('v_pk_add_f32 %s, %s, %s' % (v(FP + 2 * k, 2), v(FP + 2 * k, 2), v(FP + 8 + 2 * k, 2)))
        A('v_pk_add_f32 %s, %s, %s' % (v(FP + 16 + 2 * k, 2), v(FP + 16 + 2 * k, 2), v(FP + 24 + 2 * k, 2)))
        A('v_pk_add_f32 %s, %s, %s' % (v(FP + 2 * k, 2), v(FP + 2 * k, 2), v(FP + 16 + 2 * k, 2)))
        A('v_cvt_pk_bf16_f32 v%d, v%d, v%d' % (FP + 8 + k, FP + 2 * k, FP + 2 * k + 1))
        A('v_lshlrev_b32 v%d, 16, v%d' % (FP + 2 * k, FP + 8 + k))
        A('v_and_b32 v%d, 0xffff0000, v%d' % (FP + 2 * k + 1, FP + 8 + k))
        A('v_lshlrev_b32 v%d, 16, v%d' % (XV + 4 + 2 * k, XV + k))
        A('v_and_b32 v%d, 0xffff0000, v%d' % (XV + 5 + 2 * k, XV + k))
    A('s_lshl_b32 s%d, s%d, 13' % (sX, sWT0))
    A('s_add_u32 s%d, s%d, %d' % (sX, sX, L.PX))
    A('s_add_u32 s%d, s%d, 4096' % (sXS, sX))
    A('s_lshl_b32 s%d, s%d, 11' % (sO1, sWT0))
    A('s_add_u32 s%d, s%d, %d' % (sO1, sO1, L.PM))
    A('s_mul_i32 s%d, s%d, %d' % (sYS, sWT0, 28 * 1024))
    A('s_lshl_b32 s%d, s%d, 11' % (sT0, sN))
    A('s_add_u32 s%d, s%d, s%d' % (sYS, sYS, sT0))
    A('s_add_u32 s%d, s%d, %d' % (sYS, sYS, L.YF))
    A('s_add_u32 s%d, s%d, %d' % (sOS, sYS, 14 * 1024))
    A('s_add_u32 s%d, s%d, %d' % (sT0, sCNT, L.ctl(L.C_P)))
    wait_cnt(A, 'T_O_p', sT0, 16)
    tstamp(A, 2)
    for k in range(8):
        A('buffer_load_dwordx4 %s, v%d, %s, s%d offen offset:%d sc1' % (v(PXR + 4 * k, 4), V_L16, WS, sX if k < 4 else sXS, (k & 3) * 1024))
    for k in range(2):
        A('buffer_load_dwordx4 %s, v%d, %s, s%d offen offset:%d sc1' % (v(PMR + 4 * k, 4), V_L16, WS, sO1, k * 1024))
    for k in range(8):
        hh, tb = k >> 1, k & 1
        A('s_waitcnt vmcnt(%d)' % (9 - k))
        for c in range(2):
            acc = v(AC + 16 * c, 16)
            A('%s %s, %s, %s, %s' % (MF32, acc, a(16 * hh + 8 * c + 4 * tb, 4), v(PXR + 4 * k, 4), acc if k else '0'))
    A('s_lshl_b32 s%d, s%d, 7' % (sT0, sSG))
    A('s_add_u32 s%d, s%d, %d' % (sT0, sT0, L.ctl(L.C_Y)))
    wait_cnt(A, 'T_O_y', sT0, 28)
    tstamp(A, 3)
    for pp in range(2):
        for c in range(2):
            A('buffer_load_dwordx4 %s, v%d, %s, s%d offen offset:%d sc1' % (v(YR + 8 * pp + 4 * c, 4), V_L16, WS, (sYS, sOS)[pp], c * 1024))
    for pp in range(2):
        for c in range(2):
            A('s_waitcnt vmcnt(%d)' % (3 - 2 * pp - c))
            acc = v(AC + 16 * c, 16)
            A('%s %s, %s, %s, %s' % (MF32, acc, v(YR + 8 * pp + 4 * c, 4), v(PMR + 4 * pp, 4), acc))
    for k in range(8):
        A('ds_write_b128 v9, %s offset:%d' % (v(AC + 4 * k, 4), k * 1024))
    A('s_waitcnt lgkmcnt(0)')
    A('s_barrier')
    for src in range(4):
        for k in range(2):
            A('ds_read_b128 %s, v10 offset:%d' % (v(RR + 8 * src + 4 * k, 4), src * 8192 + k * 1024))
    A('s_waitcnt lgkmcnt(0)')
    for k in range(4):
        x = RR + 2 * k
        A('v_pk_add_f32 %s, %s, %s' % (v(x, 2), v(x, 2), v(x + 8, 2)))
        A('v_pk_add_f32 %s, %s, %s' % (v(x + 16, 2), v(x + 16, 2), v(x + 24, 2)))
        A('v_pk_add_f32 %s, %s, %s' % (v(x, 2), v(x, 2), v(x + 16, 2)))
        for add in (XV + 4 + 2 * k, FP + 2 * k):
            A('v_cvt_pk_bf16_f32 v%d, v%d, v%d' % (x + 8, x, x + 1))
            A('v_lshlrev_b32 v%d, 16, v%d' % (x, x + 8))
            A('v_and_b32 v%d, 0xffff0000, v%d' % (x + 1, x + 8))
            A('v_pk_add_f32 %s, %s, %s' % (v(x, 2), v(x, 2), v(add, 2)))
        A('v_cvt_pk_bf16_f32 v%d, v%d, v%d' % (XV + k, x, x + 1))
    A('buffer_store_dwordx4 %s, v8, %s, s%d offen' % (v(XV, 4), AUX, sO0))
    A('s_branch W_next')


def workers(A):
    dispatcher(A)
    task_QU(A)
    task_H(A)
    task_F(A)
    task_T(A)
    task_S(A)
    task_O(A)
    for k in 'QUHF':
        engine(A, k)
```

```python
import sys, os
from asm import *
import layout as L
import wrap, work, fuse, importlib
rec = importlib.import_module(os.environ.get('REC', 'rec6'))

dbg = int(os.environ.get('DBG', 0))
if dbg == 2:
    rec.TIMER = 's_memrealtime'
A = Asm()
fuse.entry(A, int(os.environ.get('FF', 0)))
work.workers(A)
rec.role_A(A, dbg)
rec.role_B(A, dbg, True)
rec.role_P(A, True, int(os.environ.get('NU', 0)))
txt = wrap.build([('main_kernel', 256, 256, work.MAIN_LDS)], [('main_kernel', A, 512, 256)])
open(sys.argv[1], 'w').write(txt)
print(len(txt))
```
